```python
import torch

def _softmax(x, axis=-1):
    return torch.softmax(x, dim=axis)

def _gelu(x):
    return torch.nn.functional.gelu(x, approximate='tanh')

def _silu(x):
    return torch.nn.functional.silu(x)

def _sigmoid(x):
    return torch.sigmoid(x)

def _layernorm(x, axis=-1, eps=1e-05):
    m = x.mean(dim=axis, keepdim=True)
    v = x.var(dim=axis, keepdim=True, unbiased=False)
    return (x - m) / torch.sqrt(v + eps)

def _scatter_add(tgt, idx, src, axis=0):
    return tgt.clone().index_add_(axis, idx, src)

def _segment_sum(src, seg, n):
    out = torch.zeros((n,) + src.shape[1:], dtype=src.dtype)
    return out.index_add_(0, seg, src)

def _pad(x, pw):
    flat = tuple((v for pair in reversed(pw) for v in pair))
    return torch.nn.functional.pad(x, flat)
kernel_name = 'interleave_layers__grouped_kv_mqa__memory_aug_recurrent_mem_tr__prompt'

def setup_inputs():

    _w = lambda a: (lambda t: t.to(torch.bfloat16) if t.is_floating_point() else t)(torch.as_tensor(a))

    def _A_setup():
        B, S, D, H = (1, 2048, 640, 32)
        Dh = D // H
        return {'x': _w((lambda *s: torch.randn(*s, dtype=torch.bfloat16) * 0.05)(B, S, D)), 'wq': _w((lambda *s: torch.randn(*s, dtype=torch.bfloat16) * 0.05)(D, H * Dh)), 'wk': _w((lambda *s: torch.randn(*s, dtype=torch.bfloat16) * 0.05)(D, Dh)), 'wv': _w((lambda *s: torch.randn(*s, dtype=torch.bfloat16) * 0.05)(D, Dh)), 'wo': _w((lambda *s: torch.randn(*s, dtype=torch.bfloat16) * 0.05)(H * Dh, D))}
    _A_in = _A_setup()

    def _B_setup():
        B, S, Dm = (1, 2048, 640)
        H, Dh = (32, 128)
        M, seg = (8, 32)
        seg = min(seg, S)
        S = S // seg * seg
        return {'x': _w((lambda *s: torch.randn(*s, dtype=torch.bfloat16) * 0.05)(B, S, Dm)), 'mem0': _w((lambda *s: torch.randn(*s, dtype=torch.bfloat16) * 0.8)(B, M, Dm)), 'Wq': _w((lambda *s: torch.randn(*s, dtype=torch.bfloat16) * 1.6)(Dm, H, Dh) * Dm ** (-0.5)), 'Wk': _w((lambda *s: torch.randn(*s, dtype=torch.bfloat16) * 1.6)(Dm, H, Dh) * Dm ** (-0.5)), 'Wv': _w((lambda *s: torch.randn(*s, dtype=torch.bfloat16) * 0.8)(Dm, H, Dh) * Dm ** (-0.5)), 'Wo': _w((lambda *s: torch.randn(*s, dtype=torch.bfloat16) * 0.8)(H, Dh, Dm) * (H * Dh) ** (-0.5)), 'seg_len': seg}
    _B_in = _B_setup()
    return {'A_x': _A_in['x'], 'A_wq': _A_in['wq'], 'A_wk': _A_in['wk'], 'A_wv': _A_in['wv'], 'A_wo': _A_in['wo'], 'B_x': _B_in['x'], 'B_mem0': _B_in['mem0'], 'B_Wq': _B_in['Wq'], 'B_Wk': _B_in['Wk'], 'B_Wv': _B_in['Wv'], 'B_Wo': _B_in['Wo'], 'B_seg_len': _B_in['seg_len']}

def reference(A_x, A_wq, A_wk, A_wv, A_wo, B_x, B_mem0, B_Wq, B_Wk, B_Wv, B_Wo, B_seg_len):

    def _A_ref(x, wq, wk, wv, wo):
        B, S, D = x.shape
        H = 32
        Dh = D // H
        q = (lambda x, *d: x.permute(*d))((x @ wq).reshape(B, S, H, Dh), 0, 2, 1, 3)
        k = x @ wk
        v = x @ wv
        scores = torch.einsum('bhqd,bkd->bhqk', q, k) * Dh ** (-0.5)
        p = _softmax(scores, axis=-1)
        o = torch.einsum('bhqk,bkd->bhqd', p, v)
        return (lambda x, *d: x.permute(*d))(o, 0, 2, 1, 3).reshape(B, S, H * Dh) @ wo

    def _B_ref(x, mem0, Wq, Wk, Wv, Wo, seg_len):
        B, S, Dm = x.shape
        H, Dh = (Wq.shape[1], Wq.shape[2])
        M = mem0.shape[1]
        scale = Dh ** (-0.5)
        n_seg = S // seg_len
        L = M + seg_len
        idx = torch.arange(L)
        mask = (idx[:, None] < M) | (idx[:, None] >= idx[None, :])
        mem = mem0
        outs = []
        for s in range(n_seg):
            xs = x[:, s * seg_len:(s + 1) * seg_len, :].clone()
            h = torch.concatenate([mem, xs], axis=1)
            q = torch.einsum('btd,dhe->bhte', h, Wq)
            k = torch.einsum('btd,dhe->bhte', h, Wk)
            v = torch.einsum('btd,dhe->bhte', h, Wv)
            scores = torch.einsum('bhqe,bhke->bhqk', q, k) * scale
            scores = torch.where(mask[None, None], scores, -1000000000.0)
            p = _softmax(scores, axis=-1)
            o = torch.einsum('bhqk,bhke->bhqe', p, v)
            o = torch.einsum('bhte,hed->btd', o, Wo)
            mem = o[:, :M, :].clone()
            outs.append(o[:, M:, :])
        return torch.concatenate(outs, axis=1)
    x = A_x
    x = x + _A_ref(_layernorm(x, axis=-1), A_wq, A_wk, A_wv, A_wo)
    x = x + _B_ref(_layernorm(x, axis=-1), B_mem0, B_Wq, B_Wk, B_Wv, B_Wo, B_seg_len)
    x = x + _A_ref(_layernorm(x, axis=-1), A_wq, A_wk, A_wv, A_wo)
    x = x + _B_ref(_layernorm(x, axis=-1), B_mem0, B_Wq, B_Wk, B_Wv, B_Wo, B_seg_len)
    return x
```

```python
import re
_reg = re.compile(r'^(-|\|)?(abs\()?([vas])(\d+|\[(\d+):(\d+)\])\)?\|?$')
def regs(op):
    op = op.strip()
    if op in ('vcc',): return [('s', 106), ('s', 107)]
    if op == 'vcc_lo': return [('s', 106)]
    if op == 'vcc_hi': return [('s', 107)]
    if op == 'm0': return [('s', 124)]
    m = _reg.match(op)
    if not m: return []
    k = m.group(3)
    lo, hi = (int(m.group(5)), int(m.group(6))) if m.group(5) else (int(m.group(4)),)*2
    if k == 'a': return [('v', 256+i) for i in range(lo, hi+1)]
    return [(k, i) for i in range(lo, hi+1)]
TRANS = ('v_exp_f32', 'v_log_f32', 'v_rcp_f32', 'v_rsq_f32', 'v_sqrt_f32')
class I:
    def __init__(s, t):
        s.t = t; body = t.split(';')[0].strip(); p = body.split(None, 1); s.m = m = p[0]
        rest = p[1] if len(p) > 1 else ''
        ops = [o.strip() for o in rest.split(',')]
        if ops:
            last = ops[-1].split(); ops[-1] = last[0] if last else ''
        R = [set(regs(o)) for o in ops]
        s.w = set(); s.r = set(); s.k = 'o'; s.st = 1; s.ab = set(); s.c = set(); s.data = set(); s.lds = False; s.dpp = False
        U = lambda L: set().union(*L) if L else set()
        if m == 's_nop': s.st = int(ops[0], 0) + 1
        elif m.startswith('v_mfma') or m.startswith('v_smfmac'):
            s.k = 'm'; s.p = 8 if '32x32' in m else 4; s.w = R[0]
            if m.startswith('v_smfmac'): s.ab = R[1] | R[2] | R[3]; s.c = R[0]
            else: s.ab = R[1] | R[2]; s.c = R[3]
            s.r = s.ab | s.c
        elif m.startswith('v_'):
            s.k = 'v'; s.dpp = ('row_' in rest or 'quad_perm' in rest)
            if 'swap' in m: s.w = R[0] | R[1]; s.r = s.w
            elif '_co_' in m: s.w = R[0] | R[1]; s.r = U(R[2:])
            else:
                s.w = R[0]; s.r = U(R[1:])
                if 'fmac' in m or 'dot2c' in m or s.dpp or 'writelane' in m: s.r |= R[0]
        elif m.startswith('ds_'):
            s.k = 'd'
            if 'read' in m or 'bperm' in m or 'swizzle' in m: s.w = R[0]; s.r = U(R[1:])
            else: s.r = U(R)
        elif m.startswith('buffer_') or m.startswith('global_'):
            s.k = 'g'
            if ' lds' in rest: s.r = U(R); s.lds = True
            elif 'load' in m: s.w = R[0]; s.r = U(R[1:])
            else:
                s.r = U(R)
                if 'x4' in m or 'x3' in m: s.data = R[0]
                if 'atomic' in m and 'sc0' in rest: s.w = R[0]
        elif m.startswith('s_'):
            s.k = 's'
            if R and not m.startswith('s_cmp') and not m.startswith('s_wait'): s.w = R[0]
def need(p, c):
    n = 0
    vw = {x for x in p.w if x[0] == 'v'}; sw = {x for x in p.w if x[0] == 's'}
    if p.k == 'm':
        big = 12 if p.p == 8 else 8
        if c.k == 'm':
            if vw & c.ab: n = max(n, big)
            if vw & c.c and not (c.c == vw and c.p == p.p): n = max(n, big - 2)
            if vw & c.w and not (c.c == vw and c.p == p.p): n = max(n, big - 2)
        elif c.k in 'vdg' and vw & (c.r | c.w): n = max(n, big)
        if c.k in 'vdg' and p.c & c.w: n = max(n, 7 if p.p == 8 else 3)
    elif p.k == 'v':
        if c.k == 'm' and vw & c.r: n = max(n, 2)
        if c.k == 'v':
            if (c.dpp or 'permlane' in c.m) and vw & c.r: n = max(n, 2)
            if ('readfirstlane' in c.m or 'readlane' in c.m) and vw & c.r: n = max(n, 1)
            if p.m.split('_e')[0] in TRANS and vw & c.r: n = max(n, 1)
            if sw & c.r: n = max(n, 4 if 'lane' in c.m else 2)
            if 'cndmask' in c.m and ('s', 106) in sw and 's[' not in c.t: n = max(n, 2)
        if c.k == 'g' and sw & c.r: n = max(n, 5)
        if c.k == 's' and sw: n = max(n, 1)
    elif p.k == 'g':
        if p.data & c.w: n = max(n, 2)
    elif p.k == 's':
        if ('s', 124) in sw and c.lds: n = max(n, 1)
    return n
def flushneed(p):
    if p.k == 'm': return 12 if p.p == 8 else 8
    if p.k == 'v': return 5 if any(x[0] == 's' and x[1] < 106 for x in p.w) else 2
    if p.k == 'g' and p.data: return 2
    if p.k == 's' and ('s', 124) in p.w: return 1
    return 0
class Asm:
    def __init__(s): s.L = []; s.n = 0; s.kern = []; s.win = []; s.vq = []; s.lq = []; s.nops = 0
    def _nop(s, n):
        s.nops += n
        while n > 0:
            k = min(n, 16); s.L.append('    s_nop %d' % (k-1)); s.win.append(I('s_nop %d' % (k-1))); n -= k
    def __call__(s, t, tag=None):
        for ln in t.split('\n'):
            ln = ln.strip()
            if not ln: continue
            if ln.endswith(':') or ln.startswith('.') or ln.startswith(';'): s.L.append(ln); continue
            c = I(ln); d = 0; n = 0
            isbr = c.m.startswith('s_branch') or c.m.startswith('s_cbranch') or c.m.startswith('s_setpc')
            for p in reversed(s.win):
                if d >= 12: break
                q = need(p, c)
                if isbr and '; nf' not in ln: q = max(q, flushneed(p) - 1)
                n = max(n, q - d); d += p.st
            if n > 0: s._nop(n)
            s.L.append('    ' + ln); s.win.append(c); s.win = s.win[-14:]
            if c.k == 'g' and not c.m.startswith('buffer_inv') and not c.m.startswith('buffer_wb'): s.vq.append(tag)
            if c.k == 'd': s.lq.append(tag)
            if c.m == 's_waitcnt':
                m = re.search(r'vmcnt\((\d+)\)', ln)
                if m: k = int(m.group(1)); s.vq = s.vq[len(s.vq)-k:] if k and k < len(s.vq) else ([] if k == 0 else s.vq)
                m = re.search(r'lgkmcnt\((\d+)\)', ln)
                if m: k = int(m.group(1)); s.lq = s.lq[len(s.lq)-k:] if k and k < len(s.lq) else ([] if k == 0 else s.lq)
    def wait(s, vm=None, lg=None):
        t = []
        for q, tag, nm, mx in ((s.vq, vm, 'vmcnt', 63), (s.lq, lg, 'lgkmcnt', 15)):
            if tag is None: continue
            tags = tag if isinstance(tag, (list, set)) else [tag]
            idx = [i for i, x in enumerate(q) if x in tags]
            if idx: t.append('%s(%d)' % (nm, min(mx, len(q) - 1 - idx[-1])))
        if t: s('s_waitcnt ' + ' '.join(t))
    def lab(s, p='L'): s.n += 1; return '%s_%d' % (p, s.n)
    def begin(s, name):
        s.L += ['.text', '.globl ' + name, '.p2align 8', '.type %s,@function' % name, name + ':']; s.win = []; s.vq = []; s.lq = []
    def desc(s, name, vgpr=256, agpr=0, sgpr=102):
        acc = (vgpr + 3)//4*4
        tot = acc + agpr if agpr else vgpr
        s.kern.append('''.amdhsa_kernel %s
  .amdhsa_next_free_vgpr %d
  .amdhsa_next_free_sgpr %d
  .amdhsa_accum_offset %d
  .amdhsa_group_segment_fixed_size 0
  .amdhsa_kernarg_size 120
  .amdhsa_user_sgpr_count 2
  .amdhsa_user_sgpr_kernarg_segment_ptr 1
  .amdhsa_system_sgpr_workgroup_id_x 1
.end_amdhsa_kernel''' % (name, tot, sgpr, acc))
    def text(s, launches, head=''):
        h = [head] if head else []
        h += ['; @launch kernel=%s grid=(%d,1,1) block=(%d,1,1) lds=%d' % l for l in launches]
        h.append('.amdgcn_target "amdgcn-amd-amdhsa--gfx950"')
        t = ['.section .rodata,"a"']
        for k in s.kern: t += ['.p2align 6', k]
        return '\n'.join(h + s.L + t) + '\n'
def v(i, n=1): return 'v%d' % i if n == 1 else 'v[%d:%d]' % (i, i+n-1)
def a(i, n=1): return 'a%d' % i if n == 1 else 'a[%d:%d]' % (i, i+n-1)
def sr(i, n=1): return 's%d' % i if n == 1 else 's[%d:%d]' % (i, i+n-1)
def R(i, n=1): return v(i, n) if i < 256 else a(i-256, n)
def srd(A, d, ptr, nbytes, off=0):
    if off:
        A('s_add_u32 s%d, s%d, 0x%x' % (d, ptr, off)); A('s_addc_u32 s%d, s%d, 0' % (d+1, ptr+1))
    else:
        A('s_mov_b32 s%d, s%d' % (d, ptr)); A('s_mov_b32 s%d, s%d' % (d+1, ptr+1))
    A('s_mov_b32 s%d, 0x%x' % (d+2, nbytes)); A('s_mov_b32 s%d, 0x20000' % (d+3))
```

```python
from k_roles1 import *
def role_AT(A):
    SA, SB, NM, O, P, Q, QN = 32, 48, 64, 80, 96, 104, 112
    sTOK, sCNT, sRED = 's32', 's33', 's34'
    A('ROLE_AT:\n s_and_b32 s3, %s, %d\n s_cbranch_scc0 AT_BODY\n s_cmp_lg_u32 %s, 0\n s_cbranch_scc1 AT_BODY\n s_cmp_ge_u32 %s, %d\n s_cbranch_scc1 AT_BODY' % (sMASK, M_P1, sPAIR, sIDX, (N_AT//3)*3))
    A('s_add_u32 s19, %s, 6\n s_mov_b32 %s, 1\n s_branch P1_BODY' % (sIDX, sRET))
    A('AT_BODY:\n s_and_b32 s3, %s, %d\n s_cbranch_scc0 EXIT2' % (sMASK, M_AT))
    A('v_and_b32 v16, 31, v0\n v_lshrrev_b32 v17, 5, v0\n v_mul_u32_u24 v18, 40, v16\n v_lshl_add_u32 v1, v17, 4, v18\n v_add_u32 v2, 32, v18\n v_lshl_add_u32 v2, v17, 30, v2')
    A('v_lshlrev_b32 v3, 6, v16\n v_lshl_add_u32 v3, v17, 4, v3\n s_lshl_b32 s3, %s, 15\n v_add_u32 v3, s3, v3' % sW)
    A('v_lshlrev_b32 v4, 12, v16\n v_lshl_add_u32 v4, v17, 3, v4\n s_lshl_b32 s3, %s, 10\n v_add_u32 v4, s3, v4' % sW)
    A('v_mul_u32_u24 v5, 112, v16\n v_lshl_add_u32 v5, v17, 4, v5\n s_mul_i32 s3, %s, 3584\n v_add_u32 v5, s3, v5' % sW)
    for k in range(3):
        A('v_add_u32 v18, %d, v0\n v_min_u32 v18, 159, v18\n v_mul_u32_u24 v19, 205, v18\n v_lshrrev_b32 v19, 10, v19\n v_mul_u32_u24 v20, 5, v19\n v_sub_u32 v20, v18, v20' % (64*k))
        A('v_mul_u32_u24 v%d, 112, v19\n v_lshl_add_u32 v%d, v20, 4, v%d' % (10+k, 6+k, 10+k))
    A('v_lshlrev_b32 v9, 3, v0\n v_mov_b32 v%d, 0\n v_mov_b32 v%d, 0\n v_cmp_eq_u32 s[50:51], 20, v16\n s_mov_b32 %s, 0' % (Q+6, Q+7, sCNT))
    A('s_mov_b32 s35, 14336')
    A('AT_PAIR:'); set_pb(A)
    A('s_lshl_b32 s49, %s, 7\n s_add_u32 s49, s49, %d' % (sPAIR, F_E1))
    poll(A, 's49', '192', 14, 58)
    A('s_mov_b32 %s, %s\n s_mul_i32 s3, %s, 1280\n s_add_u32 s3, s3, %s' % (sTOK, sIDX, sTOK, sPB))
    A('buffer_load_dwordx4 %s, v1, %s, s3 offen sc1\n buffer_load_dwordx2 %s, v2, %s, s3 offen sc1' % (v(QN, 4), WS, v(QN+4, 2), WS))
    A('s_add_u32 s36, %s, 0x%x\n s_add_u32 s37, %s, 0x%x' % (sPB, O_KP, sPB, O_VT))
    for i in range(16):
        for ks in range(2): A('buffer_load_dwordx4 %s, v3, %s, s36 offen offset:%d sc1' % (a(i*8+ks*4, 4), WS, (i & 1)*2048 + ks*32))
        if i & 1: A('s_add_u32 s36, s36, 4096')
        for t in range(2):
            for hf in range(2): A('buffer_load_dwordx2 %s, v4, %s, s37 offen offset:%d sc1' % (a(128+i*8+t*4+hf*2, 2), WS, i*64 + t*32 + hf*16))
        if i == 7: A('s_waitcnt vmcnt(10)')
    A('s_waitcnt vmcnt(0)\n s_mov_b64 exec, s[50:51]\n v_mov_b32 v16, 0x3f803f80')
    for r in range(128): A('v_accvgpr_write_b32 a%d, v16' % (128+r))
    A('s_mov_b64 exec, -1')
    def qk(i, d, c):
        A('v_mfma_f32_32x32x16_bf16 %s, %s, %s, %s' % (v(d, 16), a(i*8, 4), v(Q, 4), c))
        return 'v_mfma_f32_32x32x16_bf16 %s, %s, %s, %s' % (v(d, 16), a(i*8+4, 4), v(Q+4, 4), v(d, 16))
    def tmax(d, first):
        A(('v_max3_f32 v16, v%d, v%d, v%d' % (d, d+1, d+15)) if first else ('v_max3_f32 v16, v16, v%d, v%d\n v_max_f32 v16, v16, v%d' % (d, d+1, d+15)))
        for k in range(1, 7): A('v_max3_f32 v16, v16, v%d, v%d' % (d+2*k, d+2*k+1))
        A('v_max_f32 v16, v16, v%d' % (d+14))
    A('AT_TOK:\n s_waitcnt vmcnt(0)')
    for k in range(6): A('v_mov_b32 v%d, v%d' % (Q+k, QN+k))
    A('s_add_u32 s3, %s, %d\n s_min_u32 s3, s3, 2047\n s_mul_i32 s3, s3, 1280\n s_add_u32 s3, s3, %s' % (sTOK, N_AT, sPB))
    A('buffer_load_dwordx4 %s, v1, %s, s3 offen sc1\n buffer_load_dwordx2 %s, v2, %s, s3 offen sc1\n s_mov_b32 %s, 0' % (v(QN, 4), WS, v(QN+4, 2), WS, sRED))
    A(qk(0, SA, '0')); tmax(SA, True)
    A('AT_HAVEM:\n v_mov_b32 v17, v16\n v_permlane32_swap_b32 v16, v17\n v_max_f32 v16, v16, v17')
    for r in range(16): A('v_sub_f32 v%d, 0, v16' % (NM+r))
    A(qk(0, SA, v(NM, 16)))
    for i in range(16):
        S = (SA, SB)[i & 1]; N = (SB, SA)[i & 1]
        ex = lambda lo, hi: [A('v_exp_f32 v%d, v%d' % (S+r, S+r)) for r in range(lo, hi)]
        cv = lambda lo, hi: [A('v_cvt_pk_bf16_f32 v%d, v%d, v%d' % (P+k, S+2*k, S+2*k+1)) for k in range(lo, hi)]
        pv = lambda t: A('v_mfma_f32_32x32x16_bf16 %s, %s, %s, %s' % (v(O, 16), a(128+i*8+t*4, 4), v(P+4*t, 4), '0' if (i == 0 and t == 0) else v(O, 16)))
        nx = qk(i+1, N, v(NM, 16)) if i < 15 else None
        ex(0, 4)
        if nx: A(nx)
        ex(4, 8); cv(0, 4); ex(8, 10); pv(0); ex(10, 16); cv(4, 8); A('s_nop 1'); pv(1)
    A('v_mov_b32 v18, 0x71800000\n v_cmp_nlt_f32 vcc, v%d, v18\n s_cmp_lg_u32 %s, 0\n s_cbranch_scc1 AT_OK\n s_cmp_eq_u32 vcc_hi, 0\n s_cbranch_scc1 AT_OK' % (O+8, sRED))
    for i in range(16): A(qk(i, SA, '0')); tmax(SA, i == 0)
    A('s_mov_b32 %s, 1\n s_branch AT_HAVEM\nAT_OK:' % sRED)
    for k in range(3): A('ds_write_b128 v5, %s offset:%d' % (v(O+4*k, 4), 32*k))
    A('s_mov_b64 exec, 0xffffffff\n ds_write_b32 v5, v16 offset:96\n s_mov_b64 exec, -1\n s_waitcnt lgkmcnt(0)\n s_barrier')
    A('s_and_b32 s3, %s, 3\n s_cmp_lg_u32 s3, %s\n s_cbranch_scc1 AT_NEXT' % (sCNT, sW))
    A('s_mul_i32 s36, %s, 1280\n s_add_u32 s36, s36, %s\n s_add_u32 s36, s36, 0x%x' % (sTOK, sPB, O_OA))
    for k in range(3):
        b = 32 + k*24
        for w in range(4):
            A('ds_read_b128 %s, v%d offset:%d\n ds_read_b32 v%d, v%d offset:%d\n ds_read_b32 v%d, v%d offset:%d' % (v(b+4*w, 4), 6+k, w*3584, b+16+w, 10+k, w*3584+80, b+20+w, 10+k, w*3584+96))
        A('s_waitcnt lgkmcnt(0)')
    for k in range(3):
        b = 32 + k*24
        A('v_max3_f32 v18, v%d, v%d, v%d\n v_max_f32 v18, v18, v%d' % (b+20, b+21, b+22, b+23))
        for w in range(4): A('v_sub_f32 v%d, v%d, v18\n v_exp_f32 v%d, v%d' % (b+20+w, b+20+w, b+20+w, b+20+w))
        A('v_mul_f32 v19, v%d, v%d' % (b+16, b+20))
        for w in range(1, 4): A('v_fmac_f32 v19, v%d, v%d' % (b+16+w, b+20+w))
        A('v_rcp_f32 v19, v19')
        for j in range(4):
            A('v_mul_f32 v%d, v%d, v%d' % (b+j, b+j, b+20))
            for w in range(1, 4): A('v_fmac_f32 v%d, v%d, v%d' % (b+j, b+4*w+j, b+20+w))
            A('v_mul_f32 v%d, v%d, v19' % (b+j, b+j))
        A('v_cvt_pk_bf16_f32 v%d, v%d, v%d\n v_cvt_pk_bf16_f32 v%d, v%d, v%d' % (20+2*k, b, b+1, 21+2*k, b+2, b+3))
        if k == 2: A('s_mov_b64 exec, 0xffffffff')
        A('buffer_store_dwordx2 %s, v9, %s, s36 offen offset:%d sc1' % (v(20+2*k, 2), WS, k*512))
    A('s_lshr_b32 s3, %s, 5\n s_lshl_b32 s3, s3, 7\n s_lshl_b32 s49, %s, 13\n s_add_u32 s49, s49, s3\n s_add_u32 s49, s49, %d' % (sTOK, sPAIR, F_E2))
    A('s_mov_b64 exec, 1\n v_mov_b32 v14, 0\n v_mov_b32 v15, 1\n s_waitcnt vmcnt(0)\n buffer_atomic_add v15, v14, %s, s49 offen sc1\n s_mov_b64 exec, -1' % WS)
    A('AT_NEXT:')
    for r in (5, 6, 7, 8, 10, 11, 12): A('v_add_u32 v%d, s35, v%d' % (r, r))
    A('s_sub_u32 s35, 0, s35\n s_add_u32 %s, %s, 1\n s_add_u32 %s, %s, %d\n s_cmp_lt_u32 %s, 2048\n s_cbranch_scc1 AT_TOK' % (sCNT, sCNT, sTOK, sTOK, N_AT, sTOK))
    A('s_add_u32 %s, %s, 1\n s_cmp_lt_u32 %s, %s\n s_cbranch_scc1 AT_PAIR\nEXIT2:\n s_endpgm' % (sPAIR, sPAIR, sPAIR, sPEND))
```

```python
from k_roles1 import *
def xmax(A, x, y, op):
    for sw in ('32', '16'):
        A('v_mov_b32 v%d, v%d\n v_permlane%s_swap_b32 v%d, v%d\n %s v%d, v%d, v%d' % (y, x, sw, x, y, op, x, x, y))

def role_QA(A):
    QX = 86016
    KX, KM, VX, VM, QF, S, P, O = 16, 48, 64, 112, 128, 144, 156, 16
    A('ROLE_QA:\n s_and_b32 s19, %s, 15\n s_lshr_b32 %s, %s, 4\n s_mov_b32 %s, %d\n s_mov_b32 %s, 0' % (sIDX, sSEG0, sIDX, sSTEP, N_QA//16, sVAR)); ws_common(A)
    ldptr(A, 28, K_BWQ, 640*8192)
    A('s_lshl_b32 s65, s19, 9\n s_lshl_b32 s3, %s, 7\n s_add_u32 s65, s65, s3' % sW)
    ws_wload(A, 8192, 's65'); colsum(A, True)
    copy_ws(A, 24); src_pattern(A, False, vDS, sFS)
    A('s_lshr_b32 s3, %s, 1\n s_lshl_b32 s64, s19, 1\n s_add_u32 s64, s64, s3\n s_and_b32 s65, %s, 1' % (sW, sW))
    A('s_lshl_b32 s3, s3, 13\n s_add_u32 s3, s3, %d\n s_lshl_b32 s59, s65, 11\n s_add_u32 s59, s59, s3\n v_add_u32 v%d, s59, v%d' % (QX, vST, vL))
    A('s_lshl_b32 s59, s65, 12\n s_add_u32 s59, s59, s3\n v_add_u32 v%d, s59, v%d' % (vRS, vL))
    A('v_and_b32 v16, 15, v0\n s_lshl_b32 s3, s65, 4\n v_add_u32 v16, s3, v16\n v_lshrrev_b32 v17, 4, v0\n v_lshlrev_b32 v17, 2, v17\n v_sub_u32 v16, v16, v17')
    for t in range(2):
        for j in range(4): A('v_cmp_le_i32 s[%d:%d], %d, v16' % (66+8*t+2*j, 67+8*t+2*j, 16*t+j))
    A('v_mov_b32 v180, 0xf149f2ca')
    def setup():
        A('s_lshl_b32 s3, %s, 13\n s_add_u32 %s, s3, %d\n s_add_u32 %s, s3, %d\n s_mov_b32 %s, 3\n s_add_u32 %s, %s, 0x%x' % (sPAIR, sFIN, F_E3, sFOUT, F_E6, sTGT, sSRC, sPB, O_X1))
        A('s_lshl_b32 s59, s64, 8\n s_add_u32 s82, s3, s59')
        A('s_lshl_b32 s3, s64, 14\n s_add_u32 s83, s3, %s\n s_add_u32 s83, s83, 0x%x' % (sPB, O_KV))
        A('s_lshl_b32 s3, s64, 13\n s_add_u32 s84, s3, %s\n s_add_u32 s84, s84, 0x%x' % (sPB, O_KM))
        A('s_lshl_b32 s3, s64, 12\n s_lshl_b32 s59, s65, 17\n s_add_u32 s3, s3, s59\n s_add_u32 s3, s3, %s\n s_add_u32 %s, s3, 0x%x' % (sPB, sOUT, O_OB))
    def body():
        gemm(A, True, 4, True); stats(A, True, SC_B); lnfix(A, True, 4)
        for mt in range(2):
            for u in range(2):
                d = 20 + (mt*2+u)*4; packT(A, mt, u, d)
                A('ds_write_b128 v%d, %s offset:%d' % (vST, v(d, 4), mt*4096 + u*1024))
        A('s_waitcnt lgkmcnt(0)\n s_barrier')
        for ks in range(4): A('ds_read_b128 %s, v%d offset:%d' % (v(QF+4*ks, 4), vRS, ks*1024))
        A('s_lshl_b32 s85, %s, 2\n s_add_u32 s85, s85, s82\n s_add_u32 s49, s85, %d' % (sSEG, F_KV))
        poll(A, 's49', '1', vP, 58)
        A('s_lshl_b32 s49, %s, 19\n s_add_u32 s49, s49, s83' % sSEG)
        for ks in range(4):
            for b in range(4): A('buffer_load_dwordx4 %s, v%d, %s, s49 offen offset:%d sc1' % (v(KX+(b*4+ks)*4 if b < 2 else VX+(ks*2+b-2)*4, 4), vL, WS, b*1024))
            A('s_add_u32 s49, s49, 4096')
        A('s_add_u32 s49, s85, %d' % F_KM)
        poll(A, 's49', '1', vP, 58)
        A('s_lshl_b32 s49, %s, 18\n s_add_u32 s49, s49, s84\n s_add_u32 s59, s49, 4096' % sSEG)
        for ks in range(4): A('buffer_load_dwordx4 %s, v%d, %s, s%d offen offset:%d sc1' % (v(KM+4*ks, 4), vL, WS, (49, 59)[ks >> 1], (ks & 1)*2048), tag='km')
        for ks in range(4): A('buffer_load_dwordx4 %s, v%d, %s, s%d offen offset:%d sc1' % (v(VM+4*ks, 4), vL, WS, (49, 59)[ks >> 1], (ks & 1)*2048+1024))
        A('s_waitcnt lgkmcnt(0)')
        for ks in range(4):
            for t in range(2): A('v_mfma_f32_16x16x32_bf16 %s, %s, %s, %s' % (v(S+4+4*t, 4), v(KX+(t*4+ks)*4, 4), v(QF+4*ks, 4), v(S+4+4*t, 4) if ks else '0'))
        for k in range(8): A('v_cndmask_b32 v%d, v180, v%d, s[%d:%d]' % (S+4+k, S+4+k, 66+2*k, 67+2*k))
        A.wait(vm='km')
        for ks in range(4): A('v_mfma_f32_16x16x32_bf16 %s, %s, %s, %s' % (v(S, 4), v(KM+4*ks, 4), v(QF+4*ks, 4), v(S, 4) if ks else '0'))
        A('v_max3_f32 v162, v%d, v%d, v%d' % (S+4, S+5, S+6))
        for k in (7, 9): A('v_max3_f32 v162, v162, v%d, v%d' % (S+k, S+k+1))
        A('v_max3_f32 v162, v162, v%d, v%d\n v_max3_f32 v162, v162, v%d, v%d\n v_max_f32 v162, v162, v%d' % (S+11, S, S+1, S+2, S+3))
        xmax(A, 162, 163, 'v_max_f32')
        for k in range(12): A('v_sub_f32 v%d, v%d, v162' % (S+k, S+k))
        for k in range(12): A('v_exp_f32 v%d, v%d' % (S+k, S+k))
        A('v_add_f32 v162, v%d, v%d\n v_add_f32 v163, v%d, v%d\n v_add_f32 v162, v162, v163\n v_mul_f32 v162, 0.5, v162' % (S, S+1, S+2, S+3))
        for k in range(4, 12): A('v_add_f32 v162, v162, v%d' % (S+k))
        xmax(A, 162, 163, 'v_add_f32')
        A('v_rcp_f32 v162, v162')
        for k in range(12): A('v_mul_f32 v%d, v%d, v162' % (S+k, S+k))
        for k in range(6): A('v_cvt_pk_bf16_f32 v%d, v%d, v%d' % (P+(k+4) % 6, S+2*k, S+2*k+1))
        A('s_waitcnt vmcnt(0)')
        for t in range(8): A('v_mfma_f32_16x16x32_bf16 %s, %s, %s, 0' % (v(O+4*t, 4), v(VX+4*t, 4), v(P, 4)))
        for t in range(8): A('v_mfma_f32_16x16x16_bf16 %s, %s, %s, %s' % (v(O+4*t, 4), v(VM+2*t, 2), v(P+4, 2), v(O+4*t, 4)))
        A('s_lshl_b32 s49, %s, 18\n s_add_u32 s49, s49, %s' % (sSEG, sOUT))
        for u in range(4):
            for k in range(4): A('v_cvt_pk_bf16_f32 v%d, v%d, v%d' % (KM+4*u+k, O+8*u+2*k, O+8*u+2*k+1))
            A('buffer_store_dwordx4 %s, v%d, %s, s49 offen offset:%d sc1' % (v(KM+4*u, 4), vL, WS, u*1024))
    ws_loop(A, 'QA', setup, [body], 7, True, lambda: next_pair(A, 'QA'))

def role_BO(A):
    NS = 48; RB = 64; AC = 16
    A('ROLE_BO:\n s_mul_i32 %s, %s, 13\n s_lshr_b32 %s, %s, 8\n s_mul_i32 s3, %s, 20\n s_sub_u32 s19, %s, s3' % (sSEG0, sIDX, sSEG0, sSEG0, sSEG0, sIDX))
    A('v_lshlrev_b32 v%d, 4, v0' % vL)
    A('v_lshrrev_b32 v16, 4, v0\n v_lshlrev_b32 v16, 9, v16\n v_bfe_u32 v17, v0, 2, 2\n v_lshl_add_u32 v16, v17, 6, v16\n v_and_b32 v17, 3, v0\n v_lshl_add_u32 v16, v17, 4, v16')
    A('s_mul_i32 s48, %s, 40960\n v_add_u32 v%d, s48, v16' % (sW, vTR))
    A('v_lshrrev_b32 v16, 2, v0\n v_mul_u32_u24 v16, 1280, v16\n v_lshl_add_u32 v14, v17, 4, v16')
    ldptr(A, 28, K_BWO, 4096*1280)
    A('s_mul_i32 s60, %s, %d\n s_lshl_b32 s3, s19, 6\n s_add_u32 s60, s60, s3' % (sW, 1024*1280))
    rounds = [(WSRD, [('s60', (r*256+j*16)*1280) for j in range(16)], [(256 + ((r*8+i)*2+t)*4 + 2*p, (i*32+4*p)*64 + t*8) for i in range(8) for t in range(2) for p in range(2)], None) for r in range(4)]
    wload(A, rounds, 14, vTR, 16384, 's48', 3)
    ldptr(A, 24, K_OUT, 2048*1280)
    A('v_and_b32 v16, 15, v0\n v_mul_u32_u24 v16, 1280, v16\n v_lshrrev_b32 v17, 4, v0\n v_lshl_add_u32 v%d, v17, 4, v16' % vST)
    A('s_lshl_b32 s3, %s, 12\n v_add_u32 v%d, s3, v%d\n s_lshl_b32 s3, %s, 11\n v_add_u32 v%d, s3, v%d\n s_mov_b32 %s, 16384\n s_barrier' % (sW, vSW, vL, sW, vSR, vL, sDEL))
    A('BO_PAIR:'); set_pb(A)
    A('s_lshl_b32 s3, %s, 13\n s_add_u32 %s, s3, %d\n s_add_u32 %s, s3, %d\n s_mov_b32 %s, %s' % (sPAIR, sFIN, F_E6, sFOUT, F_E7, sSEG, sSEG0))
    A('s_lshl_b32 s3, %s, 15\n s_add_u32 %s, s3, %s\n s_add_u32 %s, %s, 0x%x' % (sW, sSRC, sPB, sSRC, sSRC, O_OB))
    A('s_and_b32 s59, %s, 1\n s_mul_i32 s59, s59, 20480\n s_lshl_b32 s3, s19, 10\n s_add_u32 s3, s3, s59\n s_add_u32 %s, s3, %s\n s_lshl_b32 s3, s19, 6\n s_add_u32 %s, s3, s59' % (sW, sRES, sPB, sOUT))
    A('BO_SEG:\n s_lshl_b32 s49, %s, 7\n s_add_u32 s49, s49, %s' % (sSEG, sFIN))
    poll(A, 's49', '16', vP, 58)
    A('s_mul_i32 s62, %s, 40960\n s_add_u32 s63, s62, %s\n s_add_u32 s3, s63, 0x%x' % (sSEG, sRES, O_X1))
    A('buffer_load_dwordx4 v[32:35], v%d, %s, s3 offen sc1' % (vL, WS))
    A('s_lshl_b32 s60, %s, 18\n s_add_u32 s60, s60, %s\n s_add_u32 s61, s60, 0x20000' % (sSEG, sSRC))
    def ld(n):
        ks, mt = n >> 1, n & 1
        if ks and ks % 4 == 0: A('s_add_u32 s%d, s%d, 4096' % (60+mt, 60+mt))
        A('buffer_load_dwordx4 %s, v%d, %s, s%d offen offset:%d sc1' % (v(RB+(n % NS)*4, 4), vL, WS, 60+mt, (ks % 4)*1024), tag=n)
    for n in range(NS): ld(n)
    for n in range(64):
        ks, mt = n >> 1, n & 1
        A.wait(vm=n)
        for t in range(2):
            d = AC + (mt*2+t)*4
            A('v_mfma_f32_16x16x32_bf16 %s, %s, %s, %s' % (v(d, 4), a((ks*2+t)*4, 4), v(RB+(n % NS)*4, 4), v(d, 4) if ks else '0'))
        if n + NS < 64: ld(n+NS)
    for k in range(4): A('ds_write_b128 v%d, %s offset:%d' % (vSW, v(AC+4*k, 4), k*1024))
    A('s_waitcnt lgkmcnt(0)\n s_barrier\n s_cmp_ge_u32 %s, 2\n s_cbranch_scc1 BO_NEXT' % sW)
    for w in range(4):
        for t in range(2): A('ds_read_b128 %s, v%d offset:%d' % (v(RB+(w*2+t)*4, 4), vSR, w*4096 + t*1024))
    A('s_waitcnt lgkmcnt(0)')
    for w in range(1, 4):
        for k in range(8): A('v_add_f32 v%d, v%d, v%d' % (RB+k, RB+k, RB+w*8+k))
    resid(A, 36, 32, RB)
    A('s_cmp_lg_u32 %s, 0\n s_cbranch_scc1 BO_FIN\n s_add_u32 s3, s63, 0x%x' % (sPAIR, O_X2))
    A('buffer_store_dwordx4 v[36:39], v%d, %s, s3 offen sc1' % (vL, WS))
    A('s_lshl_b32 s49, %s, 7\n s_add_u32 s49, s49, %s\n s_mov_b64 exec, 1\n v_mov_b32 v%d, 0\n v_mov_b32 v%d, 1\n s_waitcnt vmcnt(0)' % (sSEG, sFOUT, vP, vP+1))
    A('buffer_atomic_add v%d, v%d, %s, s49 offen sc1\n s_mov_b64 exec, -1\n s_branch BO_NEXT' % (vP+1, vP, WS))
    A('BO_FIN:\n s_add_u32 s3, s62, %s\n buffer_store_dwordx4 v[36:39], v%d, %s, s3 offen' % (sOUT, vST, SRC))
    A('BO_NEXT:\n v_add_u32 v%d, %s, v%d\n v_add_u32 v%d, %s, v%d\n s_sub_u32 %s, 0, %s' % (vSW, sDEL, vSW, vSR, sDEL, vSR, sDEL, sDEL))
    A('s_add_u32 %s, %s, %d\n s_cmp_lt_u32 %s, 64\n s_cbranch_scc1 BO_SEG' % (sSEG, sSEG, N_BO//20, sSEG))
    next_pair(A, 'BO')
```

```python
from g import *
F_E1 = 0x0
F_E2 = 0x1000; F_E3 = 0x5000; F_E6 = 0x9000; F_E7 = 0xD000
F_KV = 0x11000; F_KM = 0x15000
F_TEAM = 0x19000
FLAG_BYTES = 0x20000
RING_P = 0x100000; RING_M = 0x1C0000; RW = 0x200000
PB0 = 0x1000000; PBS = 0x6000000
O_Q = 0; O_KP = 0x300000; O_VT = 0x320000; O_OA = 0x400000; O_X1 = 0x700000; O_X2 = 0xA00000
O_KV = 0x1000000; O_KM = 0x3000000; O_OB = 0x4000000
WSB = 0x10000000
K_AX, K_WQ, K_WK, K_WV, K_WO, K_BX, K_MEM0, K_BWQ, K_BWK, K_BWV, K_BWO, K_SEG, K_OUT, K_DBG, K_WS = [8*i for i in range(15)]
N_KV, N_QA, N_BO, N_AO, N_P1 = 64, 32, 40, 6, 6
N_AT = 224 - N_KV - N_QA - N_BO - N_AO - N_P1
M_P1, M_AT, M_AO, M_KV, M_R, M_QA, M_BO = 1, 2, 4, 8, 16, 32, 64
WS = 's[8:11]'; sIDX = 's12'; sW = 's13'; sPAIR = 's14'; sPEND = 's15'; sMASK = 's16'; sPB = 's17'; sXCC = 's18'
SPIN = 0x80000

def poll(A, sflag, target, vt, st, sleep=1):
    l = A.lab('POLL'); d = A.lab('POLLD')
    A('v_mov_b32 v%d, 0' % vt)
    A('%s:\n buffer_load_dword v%d, v%d, %s, %s offen sc1\n s_waitcnt vmcnt(0)\n v_readfirstlane_b32 s%d, v%d' % (l, vt+1, vt, WS, sflag, st, vt+1))
    A('s_cmp_ge_u32 s%d, %s\n s_cbranch_scc1 %s' % (st, target, d))
    A('s_add_u32 s99, s99, 1\n s_cmp_ge_u32 s99, 0x%x\n s_cbranch_scc1 %s' % (SPIN, d))
    if sleep: A('s_sleep %d' % sleep)
    A('s_branch %s\n%s:' % (l, d))

def signal(A, sflag, vt, atomic=True):
    l = A.lab('SIG')
    A('s_cmp_lg_u32 %s, 0\n s_cbranch_scc1 %s' % (sW, l))
    A('v_mov_b32 v%d, 0\n v_mov_b32 v%d, 1\n s_mov_b64 exec, 1' % (vt, vt+1))
    if atomic: A('buffer_atomic_add v%d, v%d, %s, %s offen sc1' % (vt+1, vt, WS, sflag))
    else: A('buffer_store_dword v%d, v%d, %s, %s offen sc1' % (vt+1, vt, WS, sflag))
    A('s_mov_b64 exec, -1\n%s:' % l)

def wload(A, rounds, vdma, vtr, half_bytes, sbase, st):
    def dma(i):
        s, so, _, _ = rounds[i]
        for j, (b, c) in enumerate(so):
            A('s_add_u32 m0, %s, %d\n s_add_u32 s%d, %s, 0x%x' % (sbase, (i & 1)*half_bytes + j*1024, st, b, c))
            A('buffer_load_dwordx4 v%d, %s, s%d offen lds' % (vdma[s] if isinstance(vdma, dict) else vdma, s, st), tag=('dma', i))
    dma(0)
    if len(rounds) > 1: dma(1)
    for i, (s, so, rd, post) in enumerate(rounds):
        A.wait(vm=('dma', i))
        for item in rd:
            if callable(item): item(); continue
            d, imm = item[:2]; va = item[2] if len(item) > 2 else vtr
            A('ds_read_b64_tr_b16 %s, v%d offset:%d' % (R(d, 2), va, (i & 1)*half_bytes + imm))
        A('s_waitcnt lgkmcnt(0)')
        if post: post()
        if i + 2 < len(rounds): dma(i+2)

def entry(A, name, mask, p0, p1):
    A.begin(name)
    A('s_mov_b32 %s, %d\n s_mov_b32 %s, %d\n s_mov_b32 %s, %d\n s_branch MAIN' % (sMASK, mask, sPAIR, p0, sPEND, p1))
    A.desc(name, 256, 256)

def init_kernel(A):
    A.begin('init_kernel')
    A('s_load_dwordx2 s[4:5], s[0:1], %d\n s_waitcnt lgkmcnt(0)' % K_WS)
    srd(A, 8, 4, FLAG_BYTES)
    A('s_lshl_b32 s3, s2, 12\n v_lshlrev_b32 v1, 4, v0\n v_add_u32 v1, s3, v1')
    for i in range(4): A('v_mov_b32 v%d, 0' % (4+i))
    A('buffer_store_dwordx4 v[4:7], v1, s[8:11], 0 offen\n s_endpgm')
    A.desc('init_kernel', 8, 0, 16)

def main_head(A):
    A('MAIN:\n s_mov_b32 s99, 0\n s_cmp_ge_u32 s2, 256\n s_cbranch_scc1 EXIT')
    A('s_load_dwordx2 s[4:5], s[0:1], %d\n s_load_dwordx2 s[6:7], s[0:1], %d' % (K_WS, K_DBG))
    A('s_getreg_b32 %s, hwreg(HW_REG_XCC_ID)\n s_and_b32 %s, %s, 7' % (sXCC, sXCC, sXCC))
    A('v_lshrrev_b32 v1, 6, v0\n v_and_b32 v0, 63, v0\n v_readfirstlane_b32 %s, v1\n s_waitcnt lgkmcnt(0)' % sW)
    srd(A, 8, 4, WSB); srd(A, 20, 6, 256)
    A('s_cmp_lg_u32 %s, 0\n s_cbranch_scc1 TK_DONE' % sW)
    A('s_lshl_b32 s3, %s, 4\n v_mov_b32 v2, s3\n v_mov_b32 v3, 1\n s_mov_b64 exec, 1' % sXCC)
    A('buffer_atomic_add v3, v2, s[20:23], 0 offen sc0 sc1\n s_waitcnt vmcnt(0)\n s_mov_b64 exec, -1\n v_readfirstlane_b32 s3, v3')
    A('s_lshl_b32 s24, %s, 5\n s_add_u32 s24, s24, s3\n s_cmp_lt_u32 s3, 32\n s_cbranch_scc1 TK_HAVE' % sXCC)
    A('v_mov_b32 v2, 128\n v_mov_b32 v3, 1\n s_mov_b64 exec, 1\n buffer_atomic_add v3, v2, s[20:23], 0 offen sc0 sc1\n s_waitcnt vmcnt(0)\n s_mov_b64 exec, -1\n v_readfirstlane_b32 s25, v3')
    A('v_and_b32 v2, 7, v0\n v_lshlrev_b32 v2, 4, v2\n s_mov_b32 s27, 0')
    A('TK_W:\n buffer_load_dword v3, v2, s[20:23], 0 offen sc1\n s_waitcnt vmcnt(0)\n s_mov_b32 s26, 0')
    for i in range(8): A('v_readlane_b32 s%d, v3, %d\n s_add_u32 s26, s26, s%d' % (30+i, i, 30+i))
    A('s_add_u32 s27, s27, 1\n s_cmp_ge_u32 s27, 0x%x\n s_cbranch_scc1 TK_S\n s_cmp_lt_u32 s26, 256\n s_cbranch_scc1 TK_W\nTK_S:' % SPIN)
    A('s_mov_b32 s24, 0')
    for i in range(8):
        n = A.lab('TKN')
        A('s_min_u32 s26, s%d, 32\n s_sub_u32 s27, 32, s26\n s_cmp_ge_u32 s25, s27\n s_cbranch_scc1 %s' % (30+i, n))
        A('s_add_u32 s24, s26, s25\n s_add_u32 s24, s24, %d\n s_branch TK_HAVE\n%s:\n s_sub_u32 s25, s25, s27' % (32*i, n))
    A('TK_HAVE:\n v_mov_b32 v2, 0\n v_mov_b32 v3, s24\n ds_write_b32 v2, v3\n s_waitcnt lgkmcnt(0)')
    A('TK_DONE:\n s_barrier\n v_mov_b32 v2, 0\n ds_read_b32 v3, v2\n s_waitcnt lgkmcnt(0)\n v_readfirstlane_b32 %s, v3\n s_barrier' % sIDX)
    b = 0
    for nm, n, m in (('R', 32, M_R), ('KV', N_KV, M_KV), ('QA', N_QA, M_QA), ('BO', N_BO, M_BO), ('AO', N_AO, M_AO), ('P1', N_P1, M_P1), ('AT', N_AT, M_AT | M_P1)):
        nx = A.lab('RD')
        A('s_cmp_ge_u32 %s, %d\n s_cbranch_scc1 %s\n s_and_b32 s3, %s, %d\n s_cbranch_scc0 EXIT\n s_branch ROLE_%s\n%s:\n s_sub_u32 %s, %s, %d' % (sIDX, n, nx, sMASK, m, nm, nx, sIDX, sIDX, n))
    A('EXIT:\n s_endpgm')

def set_pb(A):
    A('s_mul_i32 %s, %s, 0x%x\n s_add_u32 %s, %s, 0x%x' % (sPB, sPAIR, PBS, sPB, sPB, PB0))
```

```python
from k_roles1 import *
from k_b import xmax
import os
DBG = int(os.environ.get('RDBG', '0'))
rL, rIDX, rPS, rRL, rMS, rML, rML2, rSW, rSR, rOW, rLW, SEL, rPF, rFL = 1, 2, 3, 4, 5, 6, 7, 8, 9, 10, 11, 12, 14, 15
AQ, AV, AF, LT, Z, KVX, RSEL = 16, 32, 40, 52, 68, 100, 108
SCB, WL = 10240, 16384
sH, sS, sP, sM, sMO, sKVB, sKMB, sFB, sRW, sRID = ['s%d' % i for i in range(32, 42)]
ORD = [(m, t, k) for k in range(10) for (m, t) in (('q', 0), ('q', 1), ('k', 0), ('k', 1))] + [('v', t, k) for k in range(10) for t in range(2)] + \
      [('o', 2*u+t, k) for u in range(5) for k in range(2) for t in range(2)]
ZP = [0, 1, 2, 3, 56, 57, 58, 59, 76, 77, 78, 79]
LP = [5+3*i for i in range(12)] + [61, 63, 66, 69, 72, 75]
LOC = {}; nreg = 0
for n, f in enumerate(ORD):
    if n in ZP: LOC[f] = ('Z', ZP.index(n))
    elif n in LP: LOC[f] = ('L', LP.index(n))
    else: LOC[f] = ('R', 112 + 8*nreg); nreg += 1
assert nreg == 50
def scr(f):
    k, i = LOC[f]; return i if k == 'L' else 18 + i

def role_R(A):
    A('ROLE_R:\n s_mov_b32 %s, %s\n s_lshl_b32 %s, %s, 5\n s_add_u32 %s, %s, %s' % (sH, sIDX, sRID, sW, sRID, sRID, sH))
    A('v_lshlrev_b32 v%d, 4, v0\n v_and_b32 v16, 15, v0\n v_lshrrev_b32 v17, 4, v0\n v_and_b32 v18, 7, v0\n v_bfe_u32 v19, v0, 3, 1\n v_and_b32 v20, 3, v0\n v_bfe_u32 v21, v0, 2, 2' % rL)
    A('v_mul_u32_u24 v%d, 0xaaaa, v19\n v_add_u32 v%d, 0x4444, v%d' % (rIDX, rIDX, rIDX))
    A('v_lshlrev_b32 v22, 3, v21\n v_lshrrev_b32 v23, 1, v17\n v_lshl_add_u32 v22, v23, 2, v22\n v_add_u32 v22, v22, v20\n v_lshlrev_b32 v22, 4, v22\n v_and_b32 v24, 1, v17\n v_lshl_add_u32 v22, v24, 3, v22')
    A('s_mul_i32 s3, %s, 10240\n s_lshl_b32 s59, %s, 9\n s_add_u32 s3, s3, s59\n v_add_u32 v%d, s3, v22' % (sH, sW, rPS))
    A('v_lshrrev_b32 v22, 3, v0\n v_mul_u32_u24 v22, 10240, v22\n v_lshl_add_u32 v22, v18, 4, v22\n s_lshl_b32 s3, %s, 7\n v_add_u32 v%d, s3, v22' % (sRID, rRL))
    A('v_lshlrev_b32 v22, 4, v18\n v_lshl_add_u32 v22, v24, 3, v22\n v_lshl_add_u32 v22, v23, 2, v22\n v_add_u32 v%d, s3, v22' % rMS)
    A('s_mul_i32 s3, %s, 2560\n v_add_u32 v%d, s3, v%d\n v_lshlrev_b32 v22, 3, v0\n s_add_u32 s3, s3, 2048\n v_add_u32 v%d, s3, v22' % (sW, rML, rL, rML2))
    A('v_lshlrev_b32 v22, 7, v17\n v_lshl_add_u32 v22, v18, 4, v22\n s_mul_i32 s3, %s, 1536\n s_add_u32 s3, s3, %d\n v_add_u32 v%d, s3, v22' % (sW, SCB, rSW))
    A('v_mul_u32_u24 v25, 3072, v19\n v_add_u32 v25, %d, v25\n v_add_u32 v%d, v25, v22\n s_lshl_b32 s3, %s, 9\n v_add_u32 v%d, s3, v22' % (SCB, rSR, sW, rOW))
    A('s_mul_i32 s48, %s, 36864\n s_add_u32 s48, s48, %d\n v_add_u32 v%d, s48, v%d\n v_lshlrev_b32 v%d, 6, v0' % (sW, WL, rLW, rL, rPF))
    A('v_lshlrev_b32 v22, 2, v24\n v_sub_u32 v22, v18, v22\n v_mov_b32 v25, 0x3f80\n v_mov_b32 v26, 0x3f800000')
    for d, src, n in ((SEL, 22, 2), (RSEL, 18, 4)):
        for k in range(n):
            A('v_cmp_eq_u32 vcc, %d, v%d\n v_cndmask_b32 v%d, 0, v25, vcc\n v_cmp_eq_u32 vcc, %d, v%d\n v_cndmask_b32 v%d, v%d, v26, vcc' % (2*k, src, d+k, 2*k+1, src, d+k, d+k))
    A('s_mov_b32 s50, 0x00ff00ff\n s_mov_b32 s51, 0x00ff00ff')
    A('s_cmp_ge_u32 %s, 80\n s_cbranch_scc1 R_NI' % sRID)
    for i in range(4): A('v_mov_b32 v%d, -1' % (28+i))
    for i in range(8): A('s_mov_b32 s3, 0x%x\n buffer_store_dwordx4 v[28:31], v%d, %s, s3 offen sc1' % (RING_P + i*81920, rRL, WS))
    for i in range(3): A('s_mov_b32 s3, 0x%x\n buffer_store_dword v28, v%d, %s, s3 offen sc1' % (RING_M + i*10240, rMS, WS))
    A('R_NI:\n s_waitcnt vmcnt(0)\n s_barrier\n s_cmp_lg_u32 %s, 0\n s_cbranch_scc1 R_NT' % sW)
    A('s_cmp_eq_u32 %s, 0\n s_cselect_b32 s3, 1, 0x10001\n v_mov_b32 v28, 144\n v_mov_b32 v29, s3\n s_mov_b64 exec, 1\n buffer_atomic_add v29, v28, s[20:23], 0 offen sc1\n s_mov_b64 exec, -1\nR_NT:' % sXCC)
    A('s_load_dwordx4 s[4:7], s[0:1], %d\n s_load_dwordx4 s[60:63], s[0:1], %d\n s_waitcnt lgkmcnt(0)' % (K_BWQ-8, K_BWK))
    srd(A, 64, 6, 640*8192); srd(A, 68, 60, 640*8192); srd(A, 72, 62, 640*8192); srd(A, 24, 4, 10240)
    ldptr(A, 76, K_BWO, 4096*1280)
    A('v_lshrrev_b32 v22, 2, v0\n v_lshlrev_b32 v104, 13, v22\n v_lshl_add_u32 v104, v20, 4, v104\n v_mul_u32_u24 v105, 1280, v22\n v_lshl_add_u32 v105, v20, 4, v105')
    A('v_lshlrev_b32 v22, 4, v23\n v_lshl_add_u32 v22, v24, 2, v22\n v_and_b32 v25, 1, v21\n v_add_u32 v22, v22, v25\n v_lshrrev_b32 v25, 1, v21\n v_lshl_add_u32 v22, v25, 3, v22')
    A('v_lshlrev_b32 v22, 6, v22\n v_lshl_add_u32 v22, v20, 4, v22\n s_mul_i32 s49, %s, 40960\n v_add_u32 v106, s49, v22' % sW)
    A('s_lshl_b32 s60, %s, 8\n s_lshl_b32 s3, %s, 6\n s_add_u32 s60, s60, s3\n s_mul_i32 s61, %s, %d\n s_add_u32 s61, s61, s3' % (sH, sW, sH, 128*1280))
    A('s_lshl_b32 s3, %s, 2\n s_add_u32 s3, s3, %s\n s_mul_i32 %s, s3, %d\n s_add_u32 %s, %s, 0x%x' % (sH, sW, sRW, 30*2048, sRW, sRW, RW))
    rounds = []
    def mk(srdn, so, frs):
        rd = []; spill = []
        for f, rowb in frs:
            if LOC[f][0] == 'R': d = LOC[f][1]
            else: d = 16 + 8*len(spill); spill.append((f, d))
            rd += [(d + hs*4 + 2*p, (rowb + hs*32 + 2*p)*64 + (f[1] & 1)*8) for hs in range(2) for p in range(2)]
        assert len(spill) <= 11
        def post():
            for f, d in spill:
                A('s_add_u32 s3, %s, %d' % (sRW, scr(f)*2048))
                for hs in range(2): A('buffer_store_dwordx4 %s, v%d, %s, s3 offen offset:%d' % (v(d+4*hs, 4), rL, WS, hs*1024))
        rounds.append((srdn, so, rd, post))
    for m, sn in (('q', 's[64:67]'), ('k', 's[68:71]'), ('v', 's[72:75]')):
        for hf in range(2): mk(sn, [('s60', (hf*320+j*16)*8192) for j in range(20)], [((m, t, hf*5+i), i*64) for i in range(5) for t in range(2)])
    for us in ((0, 1), (2, 3), (4,)):
        mk('s[76:79]', [('s61', j*16*1280 + u*256) for u in us for j in range(8)], [(('o', 2*u+t, k), (u-us[0])*128 + k*64) for u in us for k in range(2) for t in range(2)])
    wload(A, rounds, {'s[64:67]': 104, 's[68:71]': 104, 's[72:75]': 104, 's[76:79]': 105}, 106, 20480, 's49', 3)
    A('s_waitcnt vmcnt(0)\n s_barrier')
    for j in range(36): A('s_add_u32 m0, s48, %d\n s_add_u32 s3, %s, %d\n buffer_load_dwordx4 v%d, %s, s3 offen lds' % (j*1024, sRW, j*1024, rL, WS))
    for i in range(6): A('s_add_u32 s%d, %s, %d' % (64+i, sRW, (18+2*i)*2048))
    A('v_mov_b32 v28, 144\nR_TW:\n buffer_load_dword v29, v28, s[20:23], 0 offen sc1\n s_waitcnt vmcnt(0)\n v_readfirstlane_b32 s59, v29\n s_and_b32 s3, s59, 0xffff')
    A('s_add_u32 s99, s99, 1\n s_cmp_ge_u32 s99, 0x%x\n s_cbranch_scc1 R_TD\n s_cmp_lt_u32 s3, 32\n s_cbranch_scc1 R_TW\nR_TD:' % SPIN)
    A('s_mov_b32 %s, 0x%x\n s_mov_b32 %s, 0x%x\n s_mov_b32 %s, 0x%x\n s_mov_b32 s70, 0x%x' % (sP, RING_P, sM, RING_M, sMO, RING_M+20480, f2u(SC_B)))
    A('s_cmp_eq_u32 s59, 32\n s_cbranch_scc0 RS_PAIR')
    body(A, 'RF', ''); body(A, 'RS', ' sc1')

def body(A, nm, sc):
    def zload(i):
        for hs in range(2): A('buffer_load_dwordx4 %s, v%d, %s, s%d offen offset:%d sc1' % (v(Z+(i % 4)*8+4*hs, 4), rL, WS, 64+i//2, (i & 1)*2048 + hs*1024), tag=('Z', i))
    def lload(i):
        for hs in range(2): A('ds_read_b128 %s, v%d offset:%d' % (v(LT+(i % 2)*8+4*hs, 4), rLW, i*2048 + hs*1024), tag=('L', i))
    def aload(kk): A('ds_read_b128 %s, v%d offset:%d' % (v(AF+(kk % 3)*4, 4), rL, (kk % 10)*1024), tag=('A', kk))
    def sm(n, acc, af):
        f = ORD[n]; kind, i = LOC[f]
        if kind == 'Z': A.wait(vm=('Z', i)); b = v(Z+(i % 4)*8, 8)
        elif kind == 'L': A.wait(lg=('L', i)); b = v(LT+(i % 2)*8, 8)
        else: b = R(i, 8)
        A('v_smfmac_f32_16x16x64_bf16 %s, %s, %s, v%d' % (v(acc, 4), v(af, 4), b, rIDX))
        if kind == 'L' and i+2 < 18 and i+2 not in (12, 13): lload(i+2)
        if kind == 'Z' and i < 8: zload(i+4)
    def cvt(d, s_): A('v_cvt_pk_bf16_f32 v%d, v%d, v%d' % (d, s_, s_+1))
    st = {'k': 0}
    def bg(n=1):
        for _ in range(n):
            k = st['k']
            if k >= 10: return
            A.wait(lg=('A', 10+k))
            for t in range(2): sm(40+2*k+t, AV+4*t, AF+((10+k) % 3)*4)
            if k+3 < 10: aload(13+k)
            st['k'] += 1
    A('%s_PAIR:' % nm); set_pb(A)
    A('s_lshl_b32 s3, %s, 14\n s_lshl_b32 s59, %s, 12\n s_add_u32 s3, s3, s59\n s_add_u32 %s, s3, %s\n s_add_u32 %s, %s, 0x%x' % (sH, sW, sKVB, sPB, sKVB, sKVB, O_KV))
    A('s_lshr_b32 s3, s3, 1\n s_add_u32 %s, s3, %s\n s_add_u32 %s, %s, 0x%x' % (sKMB, sPB, sKMB, sKMB, O_KM))
    A('s_lshl_b32 s3, %s, 13\n s_lshl_b32 s59, %s, 8\n s_add_u32 %s, s3, s59\n s_add_u32 s71, %s, %d\n s_add_u32 %s, %s, %d\n s_mov_b32 %s, 0' % (sPAIR, sH, sFB, sFB, F_KV, sFB, sFB, F_KM, sS))
    A('s_mul_i32 s3, %s, 320\n v_bfe_u32 v16, v%d, 4, 3\n v_mul_u32_u24 v16, 1280, v16\n v_lshrrev_b32 v17, 7, v%d\n v_lshl_add_u32 v16, v17, 4, v16\n v_add_u32 v16, s3, v16\n v_lshrrev_b32 v0, 2, v%d' % (sW, rL, rL, rL))
    for i in range(3): A('buffer_load_dwordx4 %s, v16, s[24:27], 0 offen offset:%d' % (v(AF+4*i, 4), i*128))
    for i in range(4): zload(i)
    for i in range(24): A('v_mov_b32 v%d, 0' % (AQ+i))
    A('v_mov_b32 v%d, 0\n s_waitcnt vmcnt(0)\n ds_write_b128 v%d, %s\n ds_write_b128 v%d, %s offset:1024\n s_mov_b64 exec, 0xffffffff\n ds_write_b128 v%d, %s offset:2048\n s_mov_b64 exec, -1' % (rFL, rML, v(AF, 4), rML, v(AF+4, 4), rML, v(AF+8, 4)))
    if DBG: A('s_mov_b32 s94, 0\n s_mov_b32 s95, 0')
    A('%s_STEP:\n s_waitcnt lgkmcnt(0)\n s_barrier' % nm)
    A.vq = []; A.lq = []
    for k in range(3): aload(k)
    lload(0); lload(1)
    A('v_cmp_ne_u32 vcc, 0, v%d\n s_lshl_b32 s72, %s, 19\n s_add_u32 s72, s72, %s\n s_bitcmp1_b64 vcc, %s\n s_cbranch_scc0 %s_WKV ; nf\n%s_KVOK:' % (rFL, sS, sKVB, sS, nm, nm))
    for mt in range(2): A('buffer_load_dwordx4 %s, v%d, %s, s72 offen offset:%d sc1' % (v(KVX+4*mt, 4), rL, WS, mt*1024), tag='kx')
    A('s_add_u32 s3, %s, 1\n s_and_b32 s3, s3, 63\n s_bitcmp1_b64 vcc, s3\n s_cselect_b32 s59, 0x80000, 0\n s_cmp_eq_u32 s3, 0\n s_cselect_b32 s59, 0, s59\n s_add_u32 s3, s59, s72' % sS)
    A('buffer_load_dword v%d, v%d, %s, s3 offen sc1\n buffer_load_dword v%d, v0, %s, s71 offen sc1' % (rFL, rPF, WS, rFL, WS))
    A('s_lshl_b32 s3, %s, 2\n s_add_u32 s3, s3, %s\n s_sub_u32 s3, s3, 4\n s_cmp_eq_u32 %s, 0\n s_cselect_b32 s3, 0x%x, s3\n s_cmp_eq_u32 %s, 0\n s_cselect_b32 s3, s3, 0x%x' % (sS, sFB, sS, WSB, sW, WSB))
    A('s_mov_b64 exec, 1\n buffer_store_dword v%d, v0, %s, s3 offen sc1\n s_mov_b64 exec, -1' % (rIDX, WS))
    st['k'] = 0
    for n in range(40):
        k = n // 4
        if n % 4 == 0: A.wait(lg=('A', k))
        sm(n, AQ + (n % 4)*4, AF + (k % 3)*4)
        if n % 4 == 3: aload(k+3)
    bg(2)
    for t in range(4): cvt(AQ+4*t, AQ+4*t); cvt(AQ+4*t+1, AQ+4*t+2)
    for t in range(4): A('v_mfma_f32_16x16x16_bf16 %s, %s, %s, 0' % (v(AQ+4*t, 4), v(AQ+4*t, 2), v(SEL, 2)))
    bg(1)
    for b in (AQ, AQ+8):
        for k in range(4): cvt(b+k, b+2*k)
    A.wait(vm='kx')
    for t, src in enumerate((AQ+8, KVX, KVX+4)): A('v_mfma_f32_16x16x32_bf16 %s, %s, %s, 0' % (v(LT+4*t, 4), v(src, 4), v(AQ, 4)))
    for t in range(2): A('buffer_load_dwordx4 %s, v%d, %s, s72 offen offset:%d sc1' % (v(KVX+4*t, 4), rL, WS, 2048+t*1024), tag='vx')
    bg(1)
    A('s_mov_b64 exec, s[50:51]')
    for t in range(3): A('ds_write_b128 v%d, %s offset:%d' % (rSW, v(LT+4*t, 4), t*512), tag='sw')
    A('s_mov_b64 exec, -1')
    A.wait(lg='sw'); A('s_barrier')
    T2 = (LT+12, AQ, AQ+4)
    for t in range(3):
        A('ds_read_b128 %s, v%d offset:%d' % (v(LT+4*t, 4), rSR, t*512)); A('ds_read_b128 %s, v%d offset:%d' % (v(T2[t], 4), rSR, 1536+t*512), tag=('sr', t))
    bg(2)
    S = LT; M = AQ+12
    for t in range(3):
        A.wait(lg=('sr', t))
        for j in range(4): A('v_add_f32 v%d, v%d, v%d' % (S+4*t+j, S+4*t+j, T2[t]+j))
    for k in range(12): A('v_add_f32_dpp v%d, v%d, v%d row_ror:8 row_mask:0xf bank_mask:0xf' % (S+k, S+k, S+k))
    A('v_max3_f32 v%d, v%d, v%d, v%d\n v_max3_f32 v%d, v%d, v%d, v%d' % (M, S, S+1, S+2, M+1, S+3, S+4, S+5))
    A('v_max3_f32 v%d, v%d, v%d, v%d\n v_max3_f32 v%d, v%d, v%d, v%d\n v_max3_f32 v%d, v%d, v%d, v%d\n v_max_f32 v%d, v%d, v%d' % (M, M, S+6, S+7, M+1, M+1, S+8, S+9, M, M, S+10, S+11, M, M, M+1))
    bg(1); xmax(A, M, M+1, 'v_max_f32')
    A('v_mul_f32 v%d, s70, v%d' % (M, M))
    for k in range(12): A('v_fma_f32 v%d, v%d, s70, -v%d' % (S+k, S+k, M))
    bg(1)
    for k in range(12): A('v_exp_f32 v%d, v%d' % (S+k, S+k))
    bg(1)
    A('v_add_f32 v%d, v%d, v%d\n v_add_f32 v%d, v%d, v%d\n v_add_f32 v%d, v%d, v%d\n v_add_f32 v%d, v%d, v%d' % (M, S, S+1, M+1, S+2, S+3, M+2, S+4, S+5, M+3, S+6, S+7))
    A('v_add_f32 v%d, v%d, v%d\n v_add_f32 v%d, v%d, v%d\n v_add_f32 v%d, v%d, v%d\n v_add_f32 v%d, v%d, v%d\n v_add_f32 v%d, v%d, v%d' % (M, M, M+1, M+2, M+2, S+8, M+3, M+3, S+9, M+2, M+2, S+10, M+3, M+3, S+11))
    A('v_add_f32 v%d, v%d, v%d\n v_fma_f32 v%d, v%d, 0.5, v%d' % (M+2, M+2, M+3, M, M, M+2))
    bg(1); xmax(A, M, M+1, 'v_add_f32')
    A('v_rcp_f32 v%d, v%d' % (M, M))
    for k in range(12): A('v_mul_f32 v%d, v%d, v%d' % (S+k, S+k, M))
    for k in range(6): cvt(AQ+(k+4) % 6, S+2*k)
    assert st['k'] == 10
    lload(12); lload(13)
    for k in range(4): cvt(AV+k, AV+2*k)
    A.wait(vm='vx')
    for t in range(2): A('v_mfma_f32_16x16x32_bf16 %s, %s, %s, 0' % (v(AF+4*t, 4), v(KVX+4*t, 4), v(AQ, 4)))
    for t in range(2): A('v_mfma_f32_16x16x16_bf16 %s, %s, %s, %s' % (v(AF+4*t, 4), v(AV+2*t, 2), v(AQ+4, 2), v(AF+4*t, 4)))
    A('s_lshl_b32 s3, %s, 18\n s_add_u32 s3, s3, %s' % (sS, sKMB))
    A('buffer_store_dwordx4 %s, v%d, %s, s3 offen sc1\n buffer_store_dwordx4 %s, v%d, %s, s3 offen offset:1024 sc1' % (v(AQ+8, 4), rL, WS, v(AV, 4), rL, WS))
    A('s_cmp_eq_u32 %s, 63\n s_cbranch_scc1 %s_LAST ; nf' % (sS, nm))
    for k in range(4): cvt(AF+8+k, AF+2*k)
    A('s_mov_b64 exec, s[50:51]'); A('ds_write_b128 v%d, %s' % (rOW, v(AF+8, 4)), tag='ow'); A('s_mov_b64 exec, -1')
    for i in range(16): A('v_mov_b32 v%d, 0' % (AQ+i))
    A('s_add_u32 s73, %s, 4096\n s_add_u32 s74, %s, 8192\n s_add_u32 s75, %s, 81920\n s_add_u32 s76, %s, 163840\n s_add_u32 s77, %s, 245760' % ((sP,)*5))
    A.wait(lg='ow'); A('s_barrier')
    for k in range(2): A('ds_read_b128 %s, v%d offset:%d' % (v(AF+4*k, 4), rL, k*1024), tag=('O', k))
    def fin(u):
        b = AQ + (u & 1)*8; d = AV + (u & 1)*2
        for j in range(4): A('v_permlane32_swap_b32 v%d, v%d' % (b+j, b+4+j))
        for j in range(4): A('v_add_f32 v%d, v%d, v%d' % (b+j, b+j, b+4+j))
        cvt(d, b); cvt(d+1, b+2)
        A('v_min_u32 v%d, -2, v%d\n v_min_u32 v%d, -2, v%d' % (d, d, d+1, d+1))
        A('buffer_store_dwordx2 %s, v%d, %s, %s offen offset:%d%s' % (v(d, 2), rPS, WS, (sP, 's73', 's74')[u >> 1], (u & 1)*2048, sc))
        for j in range(8): A('v_mov_b32 v%d, 0' % (b+j))
    for u in range(5):
        for k in range(2):
            A.wait(lg=('O', k))
            for t in range(2): sm(60+u*4+k*2+t, AQ+(u & 1)*8+4*t, AF+4*k)
        if u: fin(u-1)
    fin(4)
    A('s_cmp_ge_u32 %s, 80\n s_cbranch_scc1 %s_NR ; nf' % (sRID, nm))
    def pa():
        for i, so in enumerate((sP, 's75', 's76', 's77')): A('buffer_load_dwordx4 %s, v%d, %s, %s offen sc1' % (v(LT+4*i, 4), rRL, WS, so), tag=('pa', i))
    pa()
    for i in range(4): zload(i)
    A.wait(vm=('pa', 3))
    A('%s_PAC:' % nm)
    D = AV+4
    for i in range(4): A('v_mfma_f32_16x16x32_bf16 %s, %s, %s, %s' % (v(D, 4), v(LT+4*i, 4), v(RSEL, 4), v(D, 4) if i else '0'))
    A('v_permlane32_swap_b32 v%d, v%d\n v_permlane32_swap_b32 v%d, v%d\n v_add_f32 v%d, v%d, v%d\n v_add_f32 v%d, v%d, v%d' % (D, D+2, D+1, D+3, D, D, D+2, D+1, D+1, D+3))
    A('v_cmp_u_f32 vcc, v%d, v%d' % (D, D+1)); cvt(D, D)
    A('v_min_u32 v%d, -2, v%d\n s_cbranch_vccnz %s_PAR ; nf\n%s_PAOK:' % (D, D, nm, nm))
    A('s_mov_b64 exec, s[50:51]\n buffer_store_dword v%d, v%d, %s, %s offen%s\n s_mov_b64 exec, -1' % (D, rMS, WS, sM, sc))
    for i in range(4): A('v_mov_b32 v%d, -1' % (LT+i))
    for so in (sP, 's75', 's76', 's77'): A('buffer_store_dwordx4 %s, v%d, %s, %s offen%s' % (v(LT, 4), rRL, WS, so, sc))
    A('buffer_store_dword v%d, v%d, %s, %s offen%s\n s_branch %s_PB0\n%s_NR:' % (LT, rMS, WS, sMO, sc, nm, nm))
    for i in range(4): zload(i)
    A('s_waitcnt vmcnt(0)\n%s_PB0:' % nm)
    for i in range(8): A('v_mov_b32 v%d, 0' % (AV+i))
    A('%s_PB:\n buffer_load_dwordx4 %s, v%d, %s, %s offen sc1\n buffer_load_dwordx4 %s, v%d, %s, %s offen offset:1024 sc1\n buffer_load_dwordx2 %s, v%d, %s, %s offen sc1\n s_waitcnt vmcnt(0)' % (nm, v(AF, 4), rML, WS, sM, v(AF+4, 4), rML, WS, sM, v(AF+8, 2), rML2, WS, sM))
    X = AF+10
    A('v_max3_u32 v%d, v%d, v%d, v%d\n v_max3_u32 v%d, v%d, v%d, v%d\n v_max3_u32 v%d, v%d, v%d, v%d\n v_max3_u32 v%d, v%d, v%d, v%d\n v_max_u32 v%d, v%d, v%d' % (X, AF, AF+1, AF+2, X+1, AF+3, AF+4, AF+5, X, X, AF+6, AF+7, X+1, X+1, AF+8, AF+9, X, X, X+1))
    A('v_cmp_eq_u32 vcc, -1, v%d\n s_cbranch_vccnz %s_PBR ; nf\n%s_PBOK:' % (X, nm, nm))
    A('ds_write_b128 v%d, %s\n ds_write_b128 v%d, %s offset:1024\n ds_write_b64 v%d, %s' % (rML, v(AF, 4), rML, v(AF+4, 4), rML2, v(AF+8, 2)))
    A('s_sub_u32 %s, 0x%x, %s\n s_mov_b32 %s, %s\n s_add_u32 %s, %s, 10240\n s_cmp_eq_u32 %s, 0x%x\n s_cselect_b32 %s, 0x%x, %s\n s_add_u32 %s, %s, 1' % (sP, 2*RING_P+327680, sP, sMO, sM, sM, sM, sM, RING_M+30720, sM, RING_M, sM, sS, sS))
    if DBG: A('s_cmp_lg_u32 %s, 2\n s_cbranch_scc1 %s_STEP\n s_memtime s[90:91]' % (sS, nm))
    A('s_branch %s_STEP' % nm)
    A('%s_PBR:' % nm)
    if DBG: A('s_add_u32 s95, s95, 1')
    A('s_add_u32 s99, s99, 1\n s_cmp_lt_u32 s99, 0x%x\n s_cbranch_scc1 %s_PB\n s_branch %s_PBOK' % (SPIN, nm, nm))
    A('%s_PAR:\n v_max3_u32 v%d, v%d, v%d, v%d' % (nm, D+2, LT, LT+1, LT+2))
    for k in range(3, 15, 2): A('v_max3_u32 v%d, v%d, v%d, v%d' % (D+2, D+2, LT+k, LT+k+1))
    A('v_max_u32 v%d, v%d, v%d\n v_cmp_eq_u32 vcc, -1, v%d\n s_cbranch_vccz %s_PAOK' % (D+2, D+2, LT+15, D+2, nm))
    if DBG: A('s_add_u32 s94, s94, 1')
    A('s_add_u32 s99, s99, 1\n s_cmp_ge_u32 s99, 0x%x\n s_cbranch_scc1 %s_PAOK' % (SPIN, nm))
    pa(); A('s_waitcnt vmcnt(0)\n s_branch %s_PAC' % nm)
    A('%s_WKV:\n%s_WK2:\n buffer_load_dword v%d, v0, %s, s71 offen sc1\n s_waitcnt vmcnt(0)\n v_cmp_ne_u32 vcc, 0, v%d\n s_bitcmp1_b64 vcc, %s\n s_cbranch_scc1 %s_KVOK' % (nm, nm, rFL, WS, rFL, sS, nm))
    A('s_add_u32 s99, s99, 1\n s_cmp_lt_u32 s99, 0x%x\n s_cbranch_scc1 %s_WK2\n s_branch %s_KVOK' % (SPIN, nm, nm))
    A('%s_LAST:\n s_waitcnt vmcnt(0) lgkmcnt(0)\n s_barrier\n s_add_u32 s49, %s, 252' % (nm, sFB))
    if DBG:
        A('s_memtime s[92:93]\n s_waitcnt lgkmcnt(0)\n s_sub_u32 s92, s92, s90\n v_mov_b32 v16, s92\n v_mov_b32 v17, s94\n v_mov_b32 v18, s95\n v_mov_b32 v19, 0')
        A('s_lshl_b32 s3, %s, 4\n s_add_u32 s3, s3, 160\n s_cmp_eq_u32 %s, 5\n s_cselect_b32 s3, s3, 0x1000\n v_mov_b32 v20, s3\n buffer_store_dwordx4 v[16:19], v20, s[20:23], 0 offen' % (sW, sH))
    signal(A, 's49', 16, False)
    A('s_nop 7\n s_nop 7'); next_pair(A, nm)
```

```python
from k_ws import *
NSET0 = 2 + N_AT//3

def ldptr(A, d, koff, nbytes):
    A('s_load_dwordx2 s[4:5], s[0:1], %d\n s_waitcnt lgkmcnt(0)' % koff); srd(A, d, 4, nbytes)

def role_P1(A):
    A('ROLE_P1:\n s_mov_b32 s19, %s\n s_mov_b32 %s, 0\nP1_BODY:' % (sIDX, sRET))
    div3(A, sSEG0, 's19', 's19')
    ws_common(A)
    A('s_lshl_b32 s64, s19, 2\n s_add_u32 s64, s64, %s\n s_mov_b32 %s, 0\n s_cmp_ge_u32 s64, 10\n s_cbranch_scc1 P1_KVW' % (sW, sVAR))
    ldptr(A, 28, K_WQ, 640*640*2)
    A('s_lshl_b32 s65, s64, 7')
    ws_wload(A, 1280, 's65'); colsum(A, True)
    A('v_and_b32 v16, 15, v0\n v_mul_u32_u24 v16, 1280, v16\n v_lshrrev_b32 v17, 4, v0\n v_lshl_add_u32 v16, v17, 4, v16\n v_add_u32 v%d, s65, v16' % vST)
    A('s_branch P1_LOOP\nP1_KVW:\n s_sub_u32 %s, s64, 9' % sVAR)
    A('s_load_dwordx4 s[4:7], s[0:1], %d\n s_waitcnt lgkmcnt(0)\n s_cmp_eq_u32 %s, 1\n s_cselect_b64 s[4:5], s[4:5], s[6:7]' % (K_WK, sVAR)); srd(A, 28, 4, 25600)
    A('v_lshrrev_b32 v16, 4, v0\n v_lshlrev_b32 v16, 3, v16\n v_bfe_u32 v17, v0, 2, 2\n v_add_u32 v16, v16, v17\n v_mul_u32_u24 v16, 40, v16\n v_and_b32 v17, 3, v0\n v_lshl_add_u32 v16, v17, 4, v16')
    for r in range(4): A('s_add_u32 s3, %s, %d\n s_and_b32 s3, s3, 3\n s_mul_i32 s3, s3, 6400\n s_add_u32 s3, s3, s48\n v_add_u32 v%d, s3, v16' % (sW, r, 20+r))
    A('s_mov_b32 s60, 0')
    rd = [(Wreg(t, i) + 2*p, ((i % 5)*32 + 4*p)*40 + t*8, 20 + i//5) for i in range(20) for t in range(2) for p in range(2)]
    wload(A, [(WSRD, [('s60', j*1024) for j in range(25)], rd, None)], vL, vTR, 0, 's48', 3)
    for t, m in ((0, 0xf000f000), (1, 0xff00ff00)):
        A('s_mov_b32 exec_lo, 0x%x\n s_mov_b32 exec_hi, 0x%x' % (m, m))
        for i in range(20):
            for j in range(4):
                r = Wreg(t, i) + j
                A(('v_accvgpr_write_b32 %s, 0' if r >= 256 else 'v_mov_b32 %s, 0') % R(r))
    A('s_mov_b64 exec, -1\n s_cmp_eq_u32 %s, 2\n s_cbranch_scc1 P1_VW' % sVAR)
    colsum(A, True, 2)
    A('v_and_b32 v16, 15, v0\n v_lshlrev_b32 v16, 6, v16\n v_lshrrev_b32 v17, 4, v0\n v_lshl_add_u32 v%d, v17, 4, v16\n s_branch P1_LOOP\nP1_VW:' % vST)
    colsum(A, False, 2)
    A('v_bfe_u32 v16, v0, 2, 2\n v_lshlrev_b32 v16, 3, v16\n v_and_b32 v17, 3, v0\n v_add_u32 v16, v16, v17\n v_lshlrev_b32 v16, 12, v16\n v_lshrrev_b32 v17, 4, v0\n v_lshl_add_u32 v%d, v17, 3, v16' % vST)
    A('P1_LOOP:')
    def setup():
        A('s_lshl_b32 %s, %s, 7\n s_add_u32 %s, %s, %d\n s_mov_b32 %s, %d\n s_cmp_lg_u32 %s, 0\n s_cbranch_scc1 P1_S1' % (sFOUT, sPAIR, sFOUT, sFOUT, F_E1, sFIN, F_E7, sPAIR))
        ldptr(A, 24, K_AX, 2048*1280); src_pattern(A, True, vDS, sFS)
        A('s_mov_b32 %s, 0\n s_mov_b32 %s, 0\n s_mov_b32 %s, %d\n s_branch P1_S2\nP1_S1:' % (sSRC, sTGT, sSTEP, NSET0))
        copy_ws(A, 24); src_pattern(A, False, vDS, sFS)
        A('s_mov_b32 %s, 0x%x\n s_mov_b32 %s, 40\n s_mov_b32 %s, 2\nP1_S2:' % (sSRC, PB0+O_X2, sTGT, sSTEP))
    def vq():
        gemm(A, True, 4, True); stats(A, True, SC_A); lnfix(A, True, 4)
        A('s_mul_i32 s49, %s, 40960\n s_add_u32 s49, s49, %s\n s_add_u32 s59, s49, 20480' % (sSEG, sPB))
        for mt in range(2):
            for u in range(2):
                d = 20 + (mt*2+u)*4; packT(A, mt, u, d)
                A('buffer_store_dwordx4 %s, v%d, %s, s%d offen offset:%d sc1' % (v(d, 4), vST, WS, (49, 59)[mt], u*64))
    def vk():
        gemm(A, True, 2, True); stats(A, True); lnfix(A, True, 2)
        A('s_lshl_b32 s49, %s, 11\n s_add_u32 s49, s49, %s\n s_add_u32 s49, s49, 0x%x' % (sSEG, sPB, O_KP))
        for mt in range(2):
            packT(A, mt, 0, 20+4*mt)
            A('buffer_store_dwordx4 %s, v%d, %s, s49 offen offset:%d sc1' % (v(20+4*mt, 4), vST, WS, mt*1024))
    def vv():
        gemm(A, False, 2, True); stats(A, False); lnfix(A, False, 2)
        A('s_lshl_b32 s49, %s, 6\n s_add_u32 s49, s49, %s\n s_add_u32 s49, s49, 0x%x\n s_add_u32 s59, s49, 0x4000' % (sSEG, sPB, O_VT))
        for t in range(2):
            packN(A, t, 40+4*t)
            for mt in range(2): A('buffer_store_dwordx2 %s, v%d, %s, s%d offen offset:%d sc1' % (v(40+4*t+2*mt, 2), vST, WS, (49, 59)[t], mt*32))
    def done():
        A('s_cmp_lg_u32 %s, 0\n s_cbranch_scc1 AT_BODY' % sRET); next_pair(A, 'P1')
    ws_loop(A, 'P1', setup, [vq, vk, vv], None, True, done)

def resid(A, d, res, src):
    for k in range(4):
        A('v_cvt_pk_bf16_f32 v56, v%d, v%d\n v_lshlrev_b32 v57, 16, v%d\n v_and_b32 v58, 0xffff0000, v%d' % (src+2*k, src+2*k+1, res+k, res+k))
        A('v_lshlrev_b32 v59, 16, v56\n v_and_b32 v56, 0xffff0000, v56\n v_add_f32 v57, v57, v59\n v_add_f32 v58, v58, v56\n v_cvt_pk_bf16_f32 v%d, v57, v58' % (d+k))

def role_AO(A):
    A('ROLE_AO:'); div3(A, sSEG0, 's19', sIDX); ws_common(A)
    A('s_lshl_b32 s64, s19, 2\n s_add_u32 s64, s64, %s\n s_mov_b32 %s, 1\n s_mov_b32 %s, 2\n s_cmp_ge_u32 s64, 10\n s_cbranch_scc1 AO_LOOP\n s_mov_b32 %s, 0' % (sW, sVAR, sSTEP, sVAR))
    ldptr(A, 28, K_WO, 640*640*2)
    A('s_lshl_b32 s65, s64, 7'); ws_wload(A, 1280, 's65')
    A('AO_LOOP:'); copy_ws(A, 24); src_pattern(A, True, vDS, sFS)
    def setup():
        A('s_lshl_b32 s3, %s, 13\n s_add_u32 %s, s3, %d\n s_add_u32 %s, s3, %d\n s_mov_b32 %s, 32\n s_add_u32 %s, %s, 0x%x' % (sPAIR, sFIN, F_E2, sFOUT, F_E3, sTGT, sSRC, sPB, O_OA))
        A('s_cmp_lg_u32 %s, 0\n s_cbranch_scc1 AO_S1' % sPAIR)
        ldptr(A, 28, K_AX, 2048*1280); src_pattern(A, True, vRS, sRFS, False)
        A('s_mov_b32 %s, 0\n s_branch AO_S2\nAO_S1:' % sRES)
        copy_ws(A, 28); src_pattern(A, False, vRS, sRFS, False)
        A('s_mov_b32 %s, 0x%x\nAO_S2:\n s_lshl_b32 s3, s64, 1\n s_mul_i32 s59, s3, %s\n s_add_u32 %s, %s, s59' % (sRES, PB0+O_X2, sRFS, sRES, sRES))
        A('s_lshl_b32 s3, s3, 10\n s_add_u32 %s, s3, %s\n s_add_u32 %s, %s, 0x%x' % (sOUT, sPB, sOUT, sOUT, O_X1))
    def v0_():
        A('s_mul_i32 s49, %s, 40960\n s_add_u32 s3, s49, %s' % (sSEG, sRES))
        for mt in range(2):
            A('s_add_u32 s59, s3, %s\n buffer_load_dwordx4 %s, v%d, %s, s3 offen sc1\n buffer_load_dwordx4 %s, v%d, %s, s59 offen sc1\n s_add_u32 s3, s3, 20480' % (sRFS, v(20+mt*8, 4), vRS, WSRD, v(24+mt*8, 4), vRS, WSRD))
        gemm(A, True, 4, False)
        A('s_mul_i32 s49, %s, 40960\n s_add_u32 s49, s49, %s\n s_add_u32 s59, s49, 20480' % (sSEG, sOUT))
        for mt in range(2):
            for u in range(2):
                d = 36 + (mt*2+u)*4; resid(A, d, 20+(mt*2+u)*4, ACC+(mt*4+2*u)*4)
                A('buffer_store_dwordx4 %s, v%d, %s, s%d offen offset:%d sc1' % (v(d, 4), vL, WS, (49, 59)[mt], u*1024))
    def v1_(): gemm(A, True, 0, False)
    ws_loop(A, 'AO', setup, [v0_, v1_], 7, True, lambda: next_pair(A, 'AO'))

def role_KV(A):
    A('ROLE_KV:\n s_and_b32 s19, %s, 31\n s_lshr_b32 %s, %s, 5\n s_mov_b32 %s, %d' % (sIDX, sSEG0, sIDX, sSTEP, N_KV//32)); ws_common(A)
    A('s_lshr_b32 %s, %s, 1' % (sVAR, sW))
    A('s_load_dwordx4 s[4:7], s[0:1], %d\n s_waitcnt lgkmcnt(0)\n s_cmp_eq_u32 %s, 0\n s_cselect_b64 s[4:5], s[4:5], s[6:7]' % (K_BWK, sVAR)); srd(A, 28, 4, 640*8192)
    A('s_and_b32 s64, %s, 1\n s_lshl_b32 s65, s19, 8\n s_lshl_b32 s3, s64, 7\n s_add_u32 s65, s65, s3' % sW)
    ws_wload(A, 8192, 's65')
    A('s_cmp_eq_u32 %s, 1\n s_cbranch_scc1 KV_C1' % sVAR); colsum(A, True); A('s_branch KV_C2\nKV_C1:'); colsum(A, False); A('KV_C2:')
    copy_ws(A, 24); src_pattern(A, False, vDS, sFS)
    def setup():
        A('s_lshl_b32 s3, %s, 13\n s_add_u32 %s, s3, %d\n s_lshl_b32 s59, s19, 8\n s_add_u32 s3, s3, s59\n s_add_u32 %s, s3, %d\n s_mov_b32 %s, 3\n s_add_u32 %s, %s, 0x%x' % (sPAIR, sFIN, F_E3, sFOUT, F_KV, sTGT, sSRC, sPB, O_X1))
        A('s_lshl_b32 s3, s19, 14\n s_lshl_b32 s59, s64, 13\n s_add_u32 s3, s3, s59\n s_add_u32 s3, s3, %s\n s_add_u32 %s, s3, 0x%x' % (sPB, sOUT, O_KV))
    def vk():
        gemm(A, True, 4, True); stats(A, True, SC_B); lnfix(A, True, 4)
        A('s_lshl_b32 s49, %s, 19\n s_add_u32 s49, s49, %s\n s_add_u32 s59, s49, 4096' % (sSEG, sOUT))
        for mt in range(2):
            for u in range(2):
                d = 20 + (mt*2+u)*4; packT(A, mt, u, d)
                A('buffer_store_dwordx4 %s, v%d, %s, s%d offen offset:%d sc1' % (v(d, 4), vL, WS, (49, 59)[u], mt*1024))
    def vv():
        gemm(A, False, 4, True); stats(A, False); lnfix(A, False, 4)
        A('s_lshl_b32 s49, %s, 19\n s_add_u32 s49, s49, %s\n s_add_u32 s59, s49, 4096' % (sSEG, sOUT))
        for t in range(4):
            packN(A, t, 40+4*t)
            A('buffer_store_dwordx4 %s, v%d, %s, s%d offen offset:%d sc1' % (v(40+4*t, 4), vL, WS, (49, 59)[t >> 1], 2048 + (t & 1)*1024))
    ws_loop(A, 'KV', setup, [vk, vv], 2, False, lambda: next_pair(A, 'KV'))
```

```python
from k_common import *
SRC = 's[24:27]'; WSRD = 's[28:31]'
sSEG, sSTEP, sSRC, sFS, sFIN, sTGT, sFOUT, sBUF, sDEL, sPRE = ['s%d' % i for i in range(32, 42)]
sSEG0 = 's42'; sRES = 's43'; sRFS = 's44'; sOUT = 's45'; sVAR = 's46'; sRET = 's47'
vL, vB, vDS, vST, vP, vSW, vSR, vRS, vTR = 1, 2, 6, 7, 8, 10, 11, 12, 13
ACC, SUM, SQ, ONES, CS, RING = 128, 160, 168, 176, 96, 64
STATS = 81920
SC_A = 20 ** -0.5 * 1.4426950408889634
SC_B = 128 ** -0.5 * 1.4426950408889634
import struct
def f2u(x): return struct.unpack('<I', struct.pack('<f', x))[0]
def Wreg(t, i): return 256 + (i*4+t)*4 if i < 16 else 192 + ((i-16)*4+t)*4

def ws_common(A):
    A('v_lshlrev_b32 v%d, 4, v0' % vL)
    for q in range(4):
        A('s_add_u32 s3, %s, %d\n s_and_b32 s3, s3, 3\n s_mul_i32 s3, s3, 5120\n v_add_u32 v%d, s3, v%d' % (sW, q, vB+q, vL))
    for i in range(4): A('v_mov_b32 v%d, 0x3f803f80' % (ONES+i))
    A('v_lshrrev_b32 v16, 4, v0\n v_lshlrev_b32 v16, 10, v16\n v_bfe_u32 v17, v0, 2, 2\n v_lshl_add_u32 v16, v17, 7, v16\n v_and_b32 v17, 3, v0\n v_lshl_add_u32 v16, v17, 4, v16')
    A('s_mul_i32 s48, %s, 40960\n v_add_u32 v%d, s48, v16' % (sW, vTR))
    A('v_and_b32 v16, 15, v0\n v_lshlrev_b32 v%d, 3, v16\n v_add_u32 v%d, %d, v%d\n s_lshl_b32 s3, %s, 8\n v_add_u32 v%d, s3, v%d' % (vSR, vSR, STATS, vSR, sW, vSW, vSR))
    A('v_and_b32 v17, 3, v0')
    for j in range(1, 4): A('v_cmp_eq_u32 s[%d:%d], %d, v17' % (48+2*j, 49+2*j, j))
    A('v_lshrrev_b32 v17, 2, v16\n v_lshrrev_b32 v18, 4, v0\n v_cmp_eq_u32 s[56:57], v17, v18')

def ws_wload(A, rowb, scol, tiles=4):
    A('v_lshrrev_b32 v16, 3, v0\n v_mul_u32_u24 v16, %d, v16\n v_and_b32 v17, 7, v0\n v_lshl_add_u32 v14, v17, 4, v16' % rowb)
    rounds = []
    for r in range(4):
        A('s_add_u32 s3, %s, %d\n s_and_b32 s3, s3, 3\n s_mul_i32 s3, s3, %d\n s_add_u32 s%d, s3, %s' % (sW, r, 160*rowb, 60+r, scol))
        so = [('s%d' % (60+r), j*8*rowb) for j in range(20)]
        rd = [(Wreg(t, r*5+i) + 2*p, (i*32 + 4*p)*128 + (t >> 1)*64 + (t & 1)*8) for i in range(5) for t in range(tiles) for p in range(2)]
        rounds.append((WSRD, so, rd, None))
    wload(A, rounds, 14, vTR, 20480, 's48', 3)

def mm(A, d, w, x, c, T):
    if T: A('v_mfma_f32_16x16x32_bf16 %s, %s, %s, %s' % (v(d, 4), R(w, 4), v(x, 4), c))
    else: A('v_mfma_f32_16x16x32_bf16 %s, %s, %s, %s' % (v(d, 4), v(x, 4), R(w, 4), c))

def colsum(A, T, tiles=4):
    for i in range(20):
        for t in range(tiles): mm(A, CS+4*t, Wreg(t, i), ONES, '0' if i == 0 else v(CS+4*t, 4), T)

def dma_tile(A, sbuf):
    A('s_mul_i32 s3, s58, 40960\n s_add_u32 s3, s3, %s\n s_mul_i32 s59, %s, 10240\n s_add_u32 s59, s59, %s' % (sSRC, sW, sbuf))
    for j in range(10):
        A('s_mov_b32 m0, s59\n s_add_u32 s59, s59, 1024\n buffer_load_dwordx4 v%d, %s, s3 offen sc1 lds\n s_add_u32 s3, s3, %s' % (vDS, SRC, sFS))

def src_pattern(A, rowmajor, vd, sfs, wave=True):
    if rowmajor:
        A('v_and_b32 v16, 15, v0\n v_mul_u32_u24 v16, 1280, v16\n v_lshrrev_b32 v17, 4, v0\n v_lshl_add_u32 v%d, v17, 4, v16\n s_mov_b32 %s, 64' % (vd, sfs))
        if wave: A('s_lshr_b32 s3, %s, 1\n s_mul_i32 s3, s3, 20480\n s_and_b32 s59, %s, 1\n s_mul_i32 s59, s59, 640\n s_add_u32 s3, s3, s59\n v_add_u32 v%d, s3, v%d' % (sW, sW, vd, vd))
    else:
        A('v_mov_b32 v%d, v%d\n s_mov_b32 %s, 1024' % (vd, vL, sfs))
        if wave: A('s_mul_i32 s3, %s, 10240\n v_add_u32 v%d, s3, v%d' % (sW, vd, vd))

def gemm(A, T, tiles, ln):
    A('s_add_u32 s58, %s, %s\n s_min_u32 s3, s58, 63\n s_lshl_b32 s3, s3, 7\n s_add_u32 s3, s3, %s\n v_mov_b32 v%d, 0' % (sSEG, sSTEP, sFIN, vP))
    A('buffer_load_dword v%d, v%d, %s, s3 offen sc1' % (vP+1, vP, WS), tag='flag')
    seq = [(i, mt) for i in range(20) for mt in range(2)]
    def rd(n):
        i, mt = seq[n]
        A('ds_read_b128 %s, v%d offset:%d' % (v(RING + (n % 8)*4, 4), vB + i//5, mt*20480 + (i % 5)*1024), tag=n)
    use = tiles > 0 or ln
    for n in range(6):
        if use: rd(n)
    for n, (i, mt) in enumerate(seq):
        if n + 6 < 40 and use: rd(n+6)
        A.wait(lg=n)
        x = RING + (n % 8)*4
        for t in range(tiles):
            d = ACC + (mt*4+t)*4
            mm(A, d, Wreg(t, i), x, '0' if i == 0 else v(d, 4), T)
        if ln and i < 5:
            A('v_mfma_f32_16x16x32_bf16 %s, %s, %s, %s' % (v(SUM+4*mt, 4), v(ONES, 4), v(x, 4), '0' if i == 0 else v(SUM+4*mt, 4)))
            A('v_mfma_f32_16x16x32_bf16 %s, %s, %s, %s' % (v(SQ+4*mt, 4), v(x, 4), v(x, 4), '0' if i == 0 else v(SQ+4*mt, 4)))
        if n == (19 if tiles == 4 else 39):
            sk = A.lab('NPF')
            A.wait(vm='flag')
            A('v_readfirstlane_b32 s3, v%d\n s_mov_b32 %s, 0\n s_cmp_ge_u32 s58, 64\n s_cbranch_scc1 %s ; nf\n s_cmp_lt_u32 s3, %s\n s_cbranch_scc1 %s ; nf' % (vP+1, sPRE, sk, sTGT, sk))
            A('s_add_u32 s49, %s, %s\n s_mov_b32 %s, 1' % (sBUF, sDEL, sPRE))
            dma_tile(A, 's49')
            A('%s:' % sk); A.vq = []

def bfr(A, d, s_):
    A('v_cvt_pk_bf16_f32 v%d, v%d, v%d\n v_lshlrev_b32 v%d, 16, v%d' % (d, s_, s_, d, d))

def stats(A, T, scale=1.0):
    for mt in range(2):
        q = SQ + 4*mt
        for j in range(1, 4): A('v_cndmask_b32 v%d, v%d, v%d, s[%d:%d]' % (q, q, q+j, 48+2*j, 49+2*j))
        A('v_mov_b32 v%d, v%d' % (SUM+4*mt+1, q))
    A('s_mov_b64 exec, s[56:57]')
    for mt in range(2): A('ds_write_b64 v%d, %s offset:%d' % (vSW, v(SUM+4*mt, 2), mt*128))
    A('s_mov_b64 exec, -1\n s_waitcnt lgkmcnt(0)\n s_barrier')
    for mt in range(2):
        for w in range(4): A('ds_read_b64 %s, v%d offset:%d' % (v(20+mt*8+2*w, 2), vSR, w*256 + mt*128))
    A('s_waitcnt lgkmcnt(0)')
    for mt in range(2):
        b = 20 + mt*8
        A('v_pk_add_f32 %s, %s, %s\n v_pk_add_f32 %s, %s, %s\n v_pk_add_f32 %s, %s, %s' % (v(b, 2), v(b, 2), v(b+2, 2), v(b+4, 2), v(b+4, 2), v(b+6, 2), v(b, 2), v(b, 2), v(b+4, 2)))
        A('v_mul_f32 v%d, 0x%x, v%d\n v_mul_f32 v%d, 0x%x, v%d' % (b, f2u(1/640.), b, b+1, f2u(1/640.), b+1))
        A('v_fma_f32 v%d, -v%d, v%d, v%d\n v_max_f32 v%d, 0, v%d' % (b+1, b, b, b+1, b+1, b+1))
        bfr(A, 16+mt, b); bfr(A, b+1, b+1)
        A('v_add_f32 v%d, 0x%x, v%d' % (b+1, f2u(1e-5), b+1)); bfr(A, b+1, b+1)
        A('v_sqrt_f32 v%d, v%d' % (b+1, b+1)); bfr(A, b+1, b+1)
        A('v_rcp_f32 v%d, v%d' % (18+mt, b+1))
        if scale != 1.0: A('v_mul_f32 v%d, 0x%x, v%d' % (18+mt, f2u(scale), 18+mt))
    if not T:
        A('v_and_b32 v36, 15, v0\n v_lshlrev_b32 v36, 2, v36\n s_lshl_b32 s3, %s, 8\n s_add_u32 s3, s3, %d\n v_add_u32 v36, s3, v36' % (sW, STATS+1024))
        A('v_and_b32 v37, 48, v0\n v_add_u32 v37, s3, v37')
        for k in range(4): A('ds_write_b32 v36, v%d offset:%d' % (16+k, k*64))
        A('s_waitcnt lgkmcnt(0)')
        for k in range(4): A('ds_read_b128 %s, v37 offset:%d' % (v(20+4*k, 4), k*64))
        A('s_waitcnt lgkmcnt(0)')

def lnfix(A, T, tiles):
    for mt in range(2):
        for t in range(tiles):
            for j in range(4):
                d = ACC + (mt*4+t)*4 + j
                m, r = (16+mt, 18+mt) if T else (20+4*mt+j, 28+4*mt+j)
                A('v_fma_f32 v%d, -v%d, v%d, v%d\n v_mul_f32 v%d, v%d, v%d' % (d, m, CS+4*t+j, d, d, d, r))

def packT(A, mt, u, d):
    s_ = ACC + (mt*4+2*u)*4
    for k in range(4): A('v_cvt_pk_bf16_f32 v%d, v%d, v%d' % (d+k, s_+2*k, s_+2*k+1))
def packN(A, t, d):
    for mt in range(2):
        s_ = ACC + (mt*4+t)*4
        for k in range(2): A('v_cvt_pk_bf16_f32 v%d, v%d, v%d' % (d+2*mt+k, s_+2*k, s_+2*k+1))

def ws_loop(A, nm, pair_setup, variants, out_shift, atomic, done):
    A('s_mov_b32 %s, 0\n s_mov_b32 %s, 40960\n s_barrier' % (sBUF, sDEL))
    A('%s_PAIR:' % nm); set_pb(A); pair_setup()
    A('s_mov_b32 %s, %s\n s_mov_b32 %s, 0' % (sSEG, sSEG0, sPRE))
    A('%s_SEG:\n s_cmp_ge_u32 %s, 64\n s_cbranch_scc1 %s_NEXTP' % (nm, sSEG, nm))
    A('s_cmp_lg_u32 %s, 0\n s_cbranch_scc1 %s_GO' % (sPRE, nm))
    A('s_lshl_b32 s49, %s, 7\n s_add_u32 s49, s49, %s' % (sSEG, sFIN))
    poll(A, 's49', sTGT, vP, 58)
    A('s_mov_b32 s58, %s' % sSEG); dma_tile(A, sBUF)
    A('s_waitcnt vmcnt(0)\n%s_GO:\n s_barrier' % nm)
    for k in range(1, len(variants)): A('s_cmp_eq_u32 %s, %d\n s_cbranch_scc1 %s_V%d' % (sVAR, k, nm, k))
    for k, f in enumerate(variants):
        A('%s_V%d:' % (nm, k)); A.vq = []; A.lq = []; f()
        if k + 1 < len(variants): A('s_branch %s_END' % nm)
    A('%s_END:\n s_waitcnt vmcnt(0)\n s_barrier' % nm)
    A('s_lshl_b32 s49, %s, %d\n s_add_u32 s49, s49, %s' % (sSEG, out_shift, sFOUT) if out_shift is not None else 's_mov_b32 s49, %s' % sFOUT)
    signal(A, 's49', vP, atomic)
    if TL and nm == 'P1': A('s_lshl_b32 s3, %s, 6\n s_add_u32 s3, s3, %s\n s_lshl_b32 s3, s3, 2\n s_add_u32 s3, s3, s19\n s_lshl_b32 s3, s3, 2\n s_add_u32 s3, s3, 0x1d000\n s_mov_b64 exec, 1' % (sPAIR, sSEG)); stamp(A, 's3', vP, vL); A('s_mov_b64 exec, -1')
    for q in range(4): A('v_add_u32 v%d, %s, v%d' % (vB+q, sDEL, vB+q))
    A('s_add_u32 %s, %s, %s\n s_sub_u32 %s, 0, %s\n s_add_u32 %s, %s, %s\n s_branch %s_SEG' % (sBUF, sBUF, sDEL, sDEL, sDEL, sSEG, sSEG, sSTEP, nm))
    A('%s_NEXTP:' % nm); done()

def next_pair(A, nm):
    A('s_add_u32 %s, %s, 1\n s_cmp_lt_u32 %s, %s\n s_cbranch_scc1 %s_PAIR\n s_endpgm' % (sPAIR, sPAIR, sPAIR, sPEND, nm))
def copy_ws(A, d):
    for i in range(4): A('s_mov_b32 s%d, s%d' % (d+i, 8+i))
def div3(A, q, r, x):
    A('s_mul_i32 %s, %s, 43\n s_lshr_b32 %s, %s, 7\n s_mul_i32 s3, %s, 3\n s_sub_u32 %s, %s, s3' % (q, x, q, q, q, r, x))
```

```python
import sys
from k_at import *
try:
    from k_b import *
except ImportError:
    def role_QA(A): A('ROLE_QA:\n s_endpgm')
    def role_BO(A): A('ROLE_BO:\n s_endpgm')
try:
    from k_r import *
except ImportError:
    def role_R(A): A('ROLE_R:\n s_endpgm')
mode = sys.argv[1]; out = sys.argv[2]
A = Asm()
L = []
if not ONE: init_kernel(A); L = [('init_kernel', FLAG_BYTES//4096, 256, 0)]
if mode == 'all':
    st = [(127, 0, 2)]
else:
    st = eval(mode)
for i, (m, p0, p1) in enumerate(st):
    entry(A, 'm%d_kernel' % i, m, p0, p1); L.append(('m%d_kernel' % i, 256, 256, 163840))
main_head(A)
role_P1(A); role_AT(A); role_AO(A); role_KV(A); role_QA(A); role_BO(A); role_R(A)
open(out, 'w').write(A.text(L))
print('lines', len(A.L), 'nops', A.nops)
```

```python
from k_roles1 import *
def xmax(A, x, y, op):
    for sw in ('32', '16'):
        A('v_mov_b32 v%d, v%d\n v_permlane%s_swap_b32 v%d, v%d\n %s v%d, v%d, v%d' % (y, x, sw, x, y, op, x, x, y))

def role_QA(A):
    QX = 86016
    KX, KM, VX, VM, QF, S, P, O = 16, 48, 64, 112, 128, 144, 156, 16
    A('ROLE_QA:\n s_and_b32 s19, %s, 15\n s_lshr_b32 %s, %s, 4\n s_mov_b32 %s, %d\n s_mov_b32 %s, 0' % (sIDX, sSEG0, sIDX, sSTEP, N_QA//16, sVAR)); ws_common(A)
    ldptr(A, 28, K_BWQ, 640*8192)
    A('s_lshl_b32 s65, s19, 9\n s_lshl_b32 s3, %s, 7\n s_add_u32 s65, s65, s3' % sW)
    ws_wload(A, 8192, 's65'); colsum(A, True)
    copy_ws(A, 24); src_pattern(A, False, vDS, sFS)
    A('s_lshr_b32 s3, %s, 1\n s_lshl_b32 s64, s19, 1\n s_add_u32 s64, s64, s3\n s_and_b32 s65, %s, 1' % (sW, sW))
    A('s_lshl_b32 s3, s3, 13\n s_add_u32 s3, s3, %d\n s_lshl_b32 s59, s65, 11\n s_add_u32 s59, s59, s3\n v_add_u32 v%d, s59, v%d' % (QX, vST, vL))
    A('s_lshl_b32 s59, s65, 12\n s_add_u32 s59, s59, s3\n v_add_u32 v%d, s59, v%d' % (vRS, vL))
    A('v_and_b32 v16, 15, v0\n s_lshl_b32 s3, s65, 4\n v_add_u32 v16, s3, v16\n v_lshrrev_b32 v17, 4, v0\n v_lshlrev_b32 v17, 2, v17\n v_sub_u32 v16, v16, v17')
    for t in range(2):
        for j in range(4): A('v_cmp_le_i32 s[%d:%d], %d, v16' % (66+8*t+2*j, 67+8*t+2*j, 16*t+j))
    A('v_mov_b32 v180, 0xf149f2ca\n v_bfe_u32 v16, v0, 1, 3\n v_and_b32 v17, 48, v0\n v_add_u32 v16, v16, v17\n v_add_u32 v16, 8, v16\n v_lshlrev_b32 v181, 4, v16')
    def setup():
        A('s_lshl_b32 s3, %s, 13\n s_add_u32 %s, s3, %d\n s_add_u32 %s, s3, %d\n s_mov_b32 %s, 3\n s_add_u32 %s, %s, 0x%x' % (sPAIR, sFIN, F_E3, sFOUT, F_E6, sTGT, sSRC, sPB, O_X1))
        A('s_lshl_b32 s59, s64, 8\n s_add_u32 s82, s3, s59')
        A('s_lshl_b32 s3, s64, 14\n s_add_u32 s83, s3, %s\n s_add_u32 s83, s83, 0x%x' % (sPB, O_KV))
        A('s_lshl_b32 s3, s64, 13\n s_add_u32 s84, s3, %s\n s_add_u32 s84, s84, 0x%x' % (sPB, O_KM))
        A('s_lshl_b32 s3, s64, 12\n s_lshl_b32 s59, s65, 17\n s_add_u32 s3, s3, s59\n s_add_u32 s3, s3, %s\n s_add_u32 %s, s3, 0x%x' % (sPB, sOUT, O_OB))
    def body():
        gemm(A, True, 4, True); stats(A, True); lnfix(A, True, 4)
        for mt in range(2):
            for u in range(2):
                d = 20 + (mt*2+u)*4; packT(A, mt, u, d)
                A('ds_write_b128 v%d, %s offset:%d' % (vST, v(d, 4), mt*4096 + u*1024))
        A('s_waitcnt lgkmcnt(0)\n s_barrier')
        for ks in range(4): A('ds_read_b128 %s, v%d offset:%d' % (v(QF+4*ks, 4), vRS, ks*1024))
        A('s_lshl_b32 s85, %s, 2\n s_add_u32 s85, s85, s82\n s_add_u32 s49, s85, %d' % (sSEG, F_KV))
        poll(A, 's49', '1', vP, 58)
        A('s_lshl_b32 s49, %s, 19\n s_add_u32 s49, s49, s83' % sSEG)
        for ks in range(4):
            for b in range(4): A('buffer_load_dwordx4 %s, v%d, %s, s49 offen offset:%d sc1' % (v(KX+(b*4+ks)*4 if b < 2 else VX+(ks*2+b-2)*4, 4), vL, WS, b*1024))
            A('s_add_u32 s49, s49, 4096')
        A('s_add_u32 s49, s85, %d' % F_KM)
        poll(A, 's49', '1', vP, 58)
        A('s_lshl_b32 s49, %s, 18\n s_add_u32 s49, s49, s84\n s_add_u32 s59, s49, 4096' % sSEG)
        for ks in range(4): A('buffer_load_dwordx4 %s, v%d, %s, s%d offen offset:%d sc1' % (v(KM+4*ks, 4), 181, WS, (49, 59)[ks >> 1], (ks & 1)*2048), tag='km')
        for ks in range(4): A('buffer_load_dwordx4 %s, v%d, %s, s%d offen offset:%d sc1' % (v(VM+4*ks, 4), vL, WS, (49, 59)[ks >> 1], (ks & 1)*2048+1024))
        A('s_waitcnt lgkmcnt(0)')
        for ks in range(4):
            for t in range(2): A('v_mfma_f32_16x16x32_bf16 %s, %s, %s, %s' % (v(S+4+4*t, 4), v(KX+(t*4+ks)*4, 4), v(QF+4*ks, 4), v(S+4+4*t, 4) if ks else '0'))
        for k in range(8): A('v_cndmask_b32 v%d, v180, v%d, s[%d:%d]' % (S+4+k, S+4+k, 66+2*k, 67+2*k))
        A.wait(vm='km')
        for ks in range(4): A('v_mfma_f32_16x16x32_bf16 %s, %s, %s, %s' % (v(S, 4), v(KM+4*ks, 4), v(QF+4*ks, 4), v(S, 4) if ks else '0'))
        A('v_max3_f32 v162, v%d, v%d, v%d' % (S+4, S+5, S+6))
        for k in (7, 9): A('v_max3_f32 v162, v162, v%d, v%d' % (S+k, S+k+1))
        for k in range(4): A('v_mul_f32 v%d, 0x%x, v%d' % (S+k, f2u(SC_B), S+k))
        A('v_max3_f32 v162, v162, v%d, v%d\n v_max3_f32 v162, v162, v%d, v%d\n v_max_f32 v162, v162, v%d' % (S+11, S, S+1, S+2, S+3))
        xmax(A, 162, 163, 'v_max_f32')
        for k in range(12): A('v_sub_f32 v%d, v%d, v162' % (S+k, S+k))
        for k in range(12): A('v_exp_f32 v%d, v%d' % (S+k, S+k))
        A('v_add_f32 v162, v%d, v%d\n v_add_f32 v163, v%d, v%d\n v_add_f32 v162, v162, v163\n v_mul_f32 v162, 0.5, v162' % (S, S+1, S+2, S+3))
        for k in range(4, 12): A('v_add_f32 v162, v162, v%d' % (S+k))
        xmax(A, 162, 163, 'v_add_f32')
        A('v_rcp_f32 v162, v162')
        for k in range(12): A('v_mul_f32 v%d, v%d, v162' % (S+k, S+k))
        for k in range(6): A('v_cvt_pk_bf16_f32 v%d, v%d, v%d' % (P+(k+4) % 6, S+2*k, S+2*k+1))
        A('s_waitcnt vmcnt(0)')
        for t in range(8): A('v_mfma_f32_16x16x32_bf16 %s, %s, %s, 0' % (v(O+4*t, 4), v(VX+4*t, 4), v(P, 4)))
        for t in range(8): A('v_mfma_f32_16x16x16_bf16 %s, %s, %s, %s' % (v(O+4*t, 4), v(VM+2*t, 2), v(P+4, 2), v(O+4*t, 4)))
        A('s_lshl_b32 s49, %s, 18\n s_add_u32 s49, s49, %s' % (sSEG, sOUT))
        for u in range(4):
            for k in range(4): A('v_cvt_pk_bf16_f32 v%d, v%d, v%d' % (KM+4*u+k, O+8*u+2*k, O+8*u+2*k+1))
            A('buffer_store_dwordx4 %s, v%d, %s, s49 offen offset:%d sc1' % (v(KM+4*u, 4), vL, WS, u*1024))
    ws_loop(A, 'QA', setup, [body], 7, True, lambda: next_pair(A, 'QA'))

def role_BO(A):
    NS = 48; RB = 64; AC = 16
    A('ROLE_BO:\n s_mul_i32 %s, %s, 13\n s_lshr_b32 %s, %s, 8\n s_mul_i32 s3, %s, 20\n s_sub_u32 s19, %s, s3' % (sSEG0, sIDX, sSEG0, sSEG0, sSEG0, sIDX))
    A('v_lshlrev_b32 v%d, 4, v0' % vL)
    A('v_lshrrev_b32 v16, 4, v0\n v_lshlrev_b32 v16, 9, v16\n v_bfe_u32 v17, v0, 2, 2\n v_lshl_add_u32 v16, v17, 6, v16\n v_and_b32 v17, 3, v0\n v_lshl_add_u32 v16, v17, 4, v16')
    A('s_mul_i32 s48, %s, 40960\n v_add_u32 v%d, s48, v16' % (sW, vTR))
    A('v_lshrrev_b32 v16, 2, v0\n v_mul_u32_u24 v16, 1280, v16\n v_lshl_add_u32 v14, v17, 4, v16')
    ldptr(A, 28, K_BWO, 4096*1280)
    A('s_mul_i32 s60, %s, %d\n s_lshl_b32 s3, s19, 6\n s_add_u32 s60, s60, s3' % (sW, 1024*1280))
    rounds = [(WSRD, [('s60', (r*256+j*16)*1280) for j in range(16)], [(256 + ((r*8+i)*2+t)*4 + 2*p, (i*32+4*p)*64 + t*8) for i in range(8) for t in range(2) for p in range(2)], None) for r in range(4)]
    wload(A, rounds, 14, vTR, 16384, 's48', 3)
    ldptr(A, 24, K_OUT, 2048*1280)
    A('v_and_b32 v16, 15, v0\n v_mul_u32_u24 v16, 1280, v16\n v_lshrrev_b32 v17, 4, v0\n v_lshl_add_u32 v%d, v17, 4, v16' % vST)
    A('s_lshl_b32 s3, %s, 12\n v_add_u32 v%d, s3, v%d\n s_lshl_b32 s3, %s, 11\n v_add_u32 v%d, s3, v%d\n s_mov_b32 %s, 16384\n s_barrier' % (sW, vSW, vL, sW, vSR, vL, sDEL))
    A('BO_PAIR:'); set_pb(A)
    A('s_lshl_b32 s3, %s, 13\n s_add_u32 %s, s3, %d\n s_add_u32 %s, s3, %d\n s_mov_b32 %s, %s' % (sPAIR, sFIN, F_E6, sFOUT, F_E7, sSEG, sSEG0))
    A('s_lshl_b32 s3, %s, 15\n s_add_u32 %s, s3, %s\n s_add_u32 %s, %s, 0x%x' % (sW, sSRC, sPB, sSRC, sSRC, O_OB))
    A('s_and_b32 s59, %s, 1\n s_mul_i32 s59, s59, 20480\n s_lshl_b32 s3, s19, 10\n s_add_u32 s3, s3, s59\n s_add_u32 %s, s3, %s\n s_lshl_b32 s3, s19, 6\n s_add_u32 %s, s3, s59' % (sW, sRES, sPB, sOUT))
    A('BO_SEG:\n s_lshl_b32 s49, %s, 7\n s_add_u32 s49, s49, %s' % (sSEG, sFIN))
    poll(A, 's49', '16', vP, 58)
    A('s_mul_i32 s62, %s, 40960\n s_add_u32 s63, s62, %s\n s_add_u32 s3, s63, 0x%x' % (sSEG, sRES, O_X1))
    A('buffer_load_dwordx4 v[32:35], v%d, %s, s3 offen sc1' % (vL, WS))
    A('s_lshl_b32 s60, %s, 18\n s_add_u32 s60, s60, %s\n s_add_u32 s61, s60, 0x20000' % (sSEG, sSRC))
    def ld(n):
        ks, mt = n >> 1, n & 1
        if ks and ks % 4 == 0: A('s_add_u32 s%d, s%d, 4096' % (60+mt, 60+mt))
        A('buffer_load_dwordx4 %s, v%d, %s, s%d offen offset:%d sc1' % (v(RB+(n % NS)*4, 4), vL, WS, 60+mt, (ks % 4)*1024), tag=n)
    for n in range(NS): ld(n)
    for n in range(64):
        ks, mt = n >> 1, n & 1
        A.wait(vm=n)
        for t in range(2):
            d = AC + (mt*2+t)*4
            A('v_mfma_f32_16x16x32_bf16 %s, %s, %s, %s' % (v(d, 4), a((ks*2+t)*4, 4), v(RB+(n % NS)*4, 4), v(d, 4) if ks else '0'))
        if n + NS < 64: ld(n+NS)
    for k in range(4): A('ds_write_b128 v%d, %s offset:%d' % (vSW, v(AC+4*k, 4), k*1024))
    A('s_waitcnt lgkmcnt(0)\n s_barrier\n s_cmp_ge_u32 %s, 2\n s_cbranch_scc1 BO_NEXT' % sW)
    for w in range(4):
        for t in range(2): A('ds_read_b128 %s, v%d offset:%d' % (v(RB+(w*2+t)*4, 4), vSR, w*4096 + t*1024))
    A('s_waitcnt lgkmcnt(0)')
    for w in range(1, 4):
        for k in range(8): A('v_add_f32 v%d, v%d, v%d' % (RB+k, RB+k, RB+w*8+k))
    resid(A, 36, 32, RB)
    A('s_cmp_lg_u32 %s, 0\n s_cbranch_scc1 BO_FIN\n s_add_u32 s3, s63, 0x%x' % (sPAIR, O_X2))
    A('buffer_store_dwordx4 v[36:39], v%d, %s, s3 offen sc1' % (vL, WS))
    A('s_lshl_b32 s49, %s, 7\n s_add_u32 s49, s49, %s\n s_mov_b64 exec, 1\n v_mov_b32 v%d, 0\n v_mov_b32 v%d, 1\n s_waitcnt vmcnt(0)' % (sSEG, sFOUT, vP, vP+1))
    A('buffer_atomic_add v%d, v%d, %s, s49 offen sc1\n s_mov_b64 exec, -1\n s_branch BO_NEXT' % (vP+1, vP, WS))
    A('BO_FIN:\n s_add_u32 s3, s62, %s\n buffer_store_dwordx4 v[36:39], v%d, %s, s3 offen' % (sOUT, vST, SRC))
    A('BO_NEXT:\n v_add_u32 v%d, %s, v%d\n v_add_u32 v%d, %s, v%d\n s_sub_u32 %s, 0, %s' % (vSW, sDEL, vSW, vSR, sDEL, vSR, sDEL, sDEL))
    A('s_add_u32 %s, %s, %d\n s_cmp_lt_u32 %s, 64\n s_cbranch_scc1 BO_SEG' % (sSEG, sSEG, N_BO//20, sSEG))
    next_pair(A, 'BO')
```

```python
from k_roles1 import *
from k_b import xmax
import os
X_ = os.environ.get('RX', '')
DBG = int(os.environ.get('RDBG', '0'))
rT, rL, rIDX, rPS, rRL, rMS, rW2, rSW, rSR, rSR2, rLW, rFL, SEL = 0, 1, 2, 3, 4, 5, 6, 7, 8, 9, 10, 11, 12
AQ, AV, AF, PL, RSEL = 16, 32, 40, 52, 100
def P(i): return PL + 8*i
SCB, WL = 10240, 16384
SENT = 0xff81ff81
sH, sS, sP, sM, sMO, sKVB, sKMB, sFB, sRW, sRID = ['s%d' % i for i in range(32, 42)]
QK = (('q', 0), ('k', 0), ('q', 1), ('k', 1))
ORD = [(m, t, k) for k in range(3) for (m, t) in QK + (('v', 0), ('v', 1))] + [(m, t, k) for k in range(3, 10) for (m, t) in QK] + \
      [('v', t, k) for k in range(3, 10) for t in range(2)] + [('o', 2*u+t, k) for u in range(5) for k in range(2) for t in range(2)]
ZP = {0: 2, 1: 3, 2: 4, 3: 5, 4: 1, 27: 2, 31: 3, 57: 2, 59: 3, 77: 2, 79: 3}
LP = [10, 12, 16, 19, 22, 25, 28, 32, 35, 38, 41, 44] + [60, 62, 66, 70, 74, 78]
NZ = len(ZP); ZL = sorted(ZP)
LOC = {}; nreg = 0
for n, f in enumerate(ORD):
    if n in ZP: LOC[f] = ('Z', ZL.index(n))
    elif n in LP: LOC[f] = ('L', LP.index(n))
    else: LOC[f] = ('R', 104 + 8*nreg); nreg += 1
assert nreg == 51 and len(LP) == 18
RWZ = RW + 128*18*2048

def role_R(A):
    A('ROLE_R:\n s_mov_b32 %s, %s\n s_lshl_b32 %s, %s, 5\n s_add_u32 %s, %s, %s' % (sH, sIDX, sRID, sW, sRID, sRID, sH))
    A('v_lshlrev_b32 v%d, 4, v0\n v_and_b32 v16, 15, v0\n v_lshrrev_b32 v17, 4, v0\n v_and_b32 v18, 7, v0\n v_bfe_u32 v19, v0, 3, 1\n v_and_b32 v20, 3, v0\n v_bfe_u32 v21, v0, 2, 2' % rL)
    A('v_and_b32 v27, 1, v0\n v_mul_u32_u24 v%d, 0xaaaa, v27\n v_add_u32 v%d, 0x4444, v%d\n v_lshrrev_b32 v23, 1, v17\n v_and_b32 v24, 1, v17' % (rIDX, rIDX, rIDX))
    A('v_lshlrev_b32 v22, 3, v0')
    A('s_mul_i32 s3, %s, 10240\n s_lshl_b32 s59, %s, 9\n s_add_u32 s3, s3, s59\n v_add_u32 v%d, s3, v22' % (sH, sW, rPS))
    A('v_lshrrev_b32 v22, 3, v0\n v_mul_u32_u24 v22, 10240, v22\n v_lshl_add_u32 v22, v18, 4, v22\n s_lshl_b32 s3, %s, 7\n v_add_u32 v%d, s3, v22' % (sRID, rRL))
    A('v_bfe_u32 v22, v0, 2, 1\n v_lshlrev_b32 v22, 8, v22\n v_lshl_add_u32 v22, v24, 5, v22\n v_bfe_u32 v25, v0, 1, 1\n v_lshl_add_u32 v22, v25, 4, v22\n v_lshl_add_u32 v22, v23, 3, v22\n v_lshl_add_u32 v22, v27, 2, v22')
    A('s_lshr_b32 s3, %s, 2\n s_lshl_b32 s3, s3, 9\n s_and_b32 s59, %s, 3\n s_lshl_b32 s59, s59, 6\n s_add_u32 s3, s3, s59\n v_add_u32 v%d, s3, v22' % (sRID, sRID, rMS))
    A('s_lshl_b32 s3, %s, 11\n v_add_u32 v%d, s3, v%d\n s_and_b32 s55, %s, 1\n s_lshl_b32 s55, s55, 10\n s_add_u32 s55, s55, 8192\n s_xor_b32 s56, s55, 1024' % (sW, rW2, rL, sW))
    A('v_lshlrev_b32 v22, 8, v23\n v_lshl_add_u32 v22, v18, 5, v22\n v_lshl_add_u32 v22, v24, 4, v22\n s_lshl_b32 s3, %s, 9\n v_add_u32 v%d, s3, v22\n v_lshl_add_u32 v%d, v19, 11, v22' % (sW, rSW, rSR))
    A('v_lshlrev_b32 v22, 5, v18\n v_lshl_add_u32 v22, v23, 4, v22\n v_lshl_add_u32 v22, v24, 3, v22\n v_lshl_add_u32 v%d, v19, 2, v22' % rSR2)
    A('s_mul_i32 s48, %s, 36864\n s_add_u32 s48, s48, %d\n v_add_u32 v%d, s48, v%d' % (sW, WL, rLW, rL))
    A('v_lshlrev_b32 v22, 1, v17\n v_sub_u32 v22, v16, v22\n v_mov_b32 v25, 0x3f803f80')
    for k in range(4): A('v_cmp_eq_u32 vcc, %d, v22\n v_cndmask_b32 v%d, 0, v25, vcc' % ((0, 1, 8, 9)[k], SEL+k))
    A('v_mov_b32 v25, 0x3f80\n v_mov_b32 v26, 0x3f800000\n v_lshl_add_u32 v22, v20, 2, v21')
    for k in range(4):
        A('v_cmp_eq_u32 vcc, %d, v22\n v_cndmask_b32 v%d, 0, v25, vcc\n v_cmp_eq_u32 vcc, %d, v22\n v_cndmask_b32 v%d, v%d, v26, vcc' % (2*k, RSEL+k, 2*k+1, RSEL+k, RSEL+k))
    A('s_mov_b32 s50, 0x00ff00ff\n s_mov_b32 s51, 0x00ff00ff\n s_mov_b32 s57, 0x%x' % SENT)
    A('s_cmp_ge_u32 %s, 80\n s_cbranch_scc1 R_NI' % sRID)
    for i in range(4): A('v_mov_b32 v%d, s57' % (28+i))
    for i in range(8): A('s_mov_b32 s3, 0x%x\n buffer_store_dwordx4 v[28:31], v%d, %s, s3 offen sc1' % (RING_P + i*81920, rRL, WS))
    for i in range(3): A('s_mov_b32 s3, 0x%x\n buffer_store_dword v28, v%d, %s, s3 offen sc1' % (RING_M + i*10240, rMS, WS))
    A('R_NI:\n s_waitcnt vmcnt(0)\n s_barrier\n s_cmp_lg_u32 %s, 0\n s_cbranch_scc1 R_NT' % sW)
    A('s_cmp_eq_u32 %s, 0\n s_cselect_b32 s3, 1, 0x10001\n v_mov_b32 v28, 144\n v_mov_b32 v29, s3\n s_mov_b64 exec, 1\n buffer_atomic_add v29, v28, s[20:23], 0 offen sc1\n s_mov_b64 exec, -1\nR_NT:' % sXCC)
    A('s_load_dwordx4 s[4:7], s[0:1], %d\n s_load_dwordx4 s[60:63], s[0:1], %d\n s_waitcnt lgkmcnt(0)' % (K_BWQ-8, K_BWK))
    srd(A, 64, 6, 640*8192); srd(A, 68, 60, 640*8192); srd(A, 72, 62, 640*8192); srd(A, 24, 4, 10240)
    ldptr(A, 76, K_BWO, 4096*1280)
    A('v_lshrrev_b32 v22, 2, v0\n v_lshlrev_b32 v96, 13, v22\n v_lshl_add_u32 v96, v20, 4, v96\n v_mul_u32_u24 v97, 1280, v22\n v_lshl_add_u32 v97, v20, 4, v97')
    A('v_lshlrev_b32 v22, 4, v23\n v_lshl_add_u32 v22, v24, 2, v22\n v_and_b32 v25, 1, v21\n v_add_u32 v22, v22, v25\n v_lshrrev_b32 v25, 1, v21\n v_lshl_add_u32 v22, v25, 3, v22')
    A('v_lshlrev_b32 v22, 6, v22\n v_lshl_add_u32 v22, v20, 4, v22\n s_mul_i32 s49, %s, 40960\n v_add_u32 v98, s49, v22' % sW)
    A('s_lshl_b32 s60, %s, 8\n s_lshl_b32 s3, %s, 6\n s_add_u32 s60, s60, s3\n s_mul_i32 s61, %s, %d\n s_add_u32 s61, s61, s3' % (sH, sW, sH, 128*1280))
    for p in range(10):
        if p in (2, 3): A('s_lshl_b32 s3, s%d, 9' % (55, 56)[p-2])
        else:
            q = (0, 0, 0, 0, 1, 1, 2, 2, 3, 3)[p]
            A('s_xor_b32 s3, %s, %d\n s_lshl_b32 s3, s3, 20\n s_add_u32 s3, s3, 0x%x' % (sW, q, (p & 1)*64*8192))
        A('s_add_u32 s%d, s3, s60' % (80+p))
    A('s_lshl_b32 s3, %s, 2\n s_add_u32 s3, s3, %s\n s_mul_i32 %s, s3, %d\n s_add_u32 %s, %s, 0x%x\n s_mul_i32 s62, s3, %d\n s_add_u32 s62, s62, 0x%x' % (sH, sW, sRW, 18*2048, sRW, sRW, RW, NZ*2048, RWZ))
    rounds = []
    def mk(srdn, so, frs):
        rd = []; spill = []
        for f, rowb in frs:
            if LOC[f][0] == 'R': d = LOC[f][1]
            else: d = 16 + 8*len(spill); spill.append((f, d))
            rd += [(d + hs*4 + 2*p, (rowb + hs*32 + 2*p)*64 + (f[1] & 1)*8) for hs in range(2) for p in range(2)]
        assert len(spill) <= 10
        def post():
            for f, d in spill:
                A('s_add_u32 s3, %s, %d' % (sRW if LOC[f][0] == 'L' else 's62', LOC[f][1]*2048))
                for hs in range(2): A('buffer_store_dwordx4 %s, v%d, %s, s3 offen offset:%d' % (v(d+4*hs, 4), rL, WS, hs*1024))
        rounds.append((srdn, so, rd, post))
    for m, sn in (('q', 's[64:67]'), ('k', 's[68:71]'), ('v', 's[72:75]')):
        for hf in range(2): mk(sn, [('s%d' % (80+hf*5+i), j*16*8192) for i in range(5) for j in range(4)], [((m, t, hf*5+i), i*64) for i in range(5) for t in range(2)])
    for us in ((0, 1), (2, 3), (4,)):
        mk('s[76:79]', [('s61', j*16*1280 + u*256) for u in us for j in range(8)], [(('o', 2*u+t, k), (u-us[0])*128 + k*64) for u in us for k in range(2) for t in range(2)])
    wload(A, rounds, {'s[64:67]': 96, 's[68:71]': 96, 's[72:75]': 96, 's[76:79]': 97}, 98, 20480, 's49', 3)
    A('s_waitcnt vmcnt(0)\n s_barrier')
    for j in range(36): A('s_add_u32 m0, s48, %d\n s_add_u32 s3, %s, %d\n buffer_load_dwordx4 v%d, %s, s3 offen lds' % (j*1024, sRW, j*1024, rL, WS))
    for i in range(6): A('s_add_u32 s%d, s62, %d' % (64+i, 0 if 'ZHOT' in X_ else i*4096))
    A('v_mov_b32 v28, 144\nR_TW:\n buffer_load_dword v29, v28, s[20:23], 0 offen sc1\n s_waitcnt vmcnt(0)\n v_readfirstlane_b32 s59, v29\n s_and_b32 s3, s59, 0xffff')
    A('s_add_u32 s99, s99, 1\n s_cmp_ge_u32 s99, 0x%x\n s_cbranch_scc1 R_TD\n s_cmp_lt_u32 s3, 32\n s_cbranch_scc1 R_TW\nR_TD:' % SPIN)
    A('s_mov_b32 %s, 0x%x\n s_mov_b32 %s, 0x%x\n s_mov_b32 %s, 0x%x\n s_mov_b32 s70, 0x%x' % (sP, RING_P, sM, RING_M, sMO, RING_M+20480, f2u(SC_B)))
    A('s_mov_b32 s60, 0x%x\n s_mov_b32 s61, 0x%x\n s_mov_b32 s63, 0xff810000' % (f2u(2.0**-80), f2u(2.0**80)))
    A('s_cmp_eq_u32 s59, %d\n s_cbranch_scc0 RS_PAIR' % (33 if 'SLOW' in X_ else 32))
    body(A, 'RF', ''); body(A, 'RS', ' sc1')
from k_rb import body
```

```python
from k_r import *
DLA = int(os.environ.get('DLA', '0')); DLB = int(os.environ.get('DLB', '0')); L1N = int(os.environ.get('L1N', '0')); KVF = os.environ.get('KVF', 'nt'); PFF = os.environ.get('PFF', 'sc1')
def body(A, nm, sc):
    st = {'k': 0}
    AC_ = [42, 43, 44, 45, 46, 47, 52, 53]
    def ts(i):
        if DBG: A('s_memtime s[%d:%d]' % (78+2*i, 79+2*i))
    def zl(i, hs):
        if 'NOZ' in X_ and st.get('loop'): return
        A('buffer_load_dwordx4 %s, v%d, %s, s%d offen offset:%d%s' % (v(P(ZP[ZL[i]])+4*hs, 4), rL, WS, 64+i//2, (i & 1)*2048 + hs*1024, '' if i < L1N else ' sc1'), tag=('Z', i))
    def zload(i): zl(i, 0); zl(i, 1)
    def lload(i):
        for hs in range(2): A('ds_read_b128 %s, v%d offset:%d' % (v(P(4+i % 2)+4*hs, 4), rLW, i*2048 + hs*1024), tag=('L', i))
    def aload(i):
        p = 3 + i % 7
        if p == 3: A('v_add_u32 v%d, s56, v%d' % (rT, rL))
        elif p % 2 == 0: A('v_xor_b32 v%d, %d, v%d' % (rT, (p//2-1)*2048, rW2))
        A('ds_read_b128 %s, v%d offset:%d' % (v(AF+(i % 3)*4, 4), rT, 0 if p == 3 else (p & 1)*1024), tag=('A', i))
    def kvl(d, off, tag, so='s72'): A('buffer_load_dwordx4 %s, v%d, %s, %s offen offset:%d %s' % (v(d, 4), rL, WS, so, off, KVF), tag=tag)
    def rst(u): A('buffer_store_dwordx2 %s, v%d, %s, %s offen offset:%d%s' % (v(AQ+12, 2), rPS, WS, ('s28', 's29', 's30')[u >> 1], (u & 1)*2048, sc))
    sal = ['s_add_u32 s4, %s, 1\n s_min_u32 s4, s4, 63' % sS, 's_bitcmp1_b64 s[48:49], s4\n s_cbranch_scc0 %s_WKV ; nf\n%s_KVOK:' % (nm, nm), 's_lshl_b32 s4, %s, 19\n s_add_u32 s4, s4, %s' % ('0' if 'KVHOT' in X_ else 's4', sKVB),
           's_lshl_b32 s5, %s, 2\n s_add_u32 s5, s5, s31' % sS, 's_cmp_eq_u32 %s, 0\n s_cselect_b32 s5, 0x%x, s5' % (sS, WSB), 's_lshl_b32 s6, %s, 18\n s_add_u32 s6, s6, %s' % (sS, sKMB),
           's_sub_u32 s28, 0x%x, %s\n s_add_u32 s29, s28, 4096' % (2*RING_P+327680, sP), 's_add_u32 s30, s28, 8192\n s_add_u32 s73, %s, 4096' % sP, 's_add_u32 s74, %s, 8192\n s_add_u32 s75, %s, 81920' % (sP, sP),
           's_add_u32 s76, %s, 163840\n s_add_u32 s77, %s, 245760' % (sP, sP), 's_add_u32 s7, %s, s55\n s_mov_b32 s58, 0' % sM]
    after = {0: lambda: zl(5, 0), 1: lambda: zl(5, 1), 2: lambda: lload(0), 3: lambda: lload(1), 4: lambda: zl(6, 0), 7: lambda: zl(6, 1), 9: lambda: kvl(P(1), 2048, 'vx'), 13: lambda: kvl(P(1)+4, 3072, 'vx'),
             27: lambda: zl(7, 0), 31: lambda: zl(7, 1), 34: lambda: zl(8, 0), 39: lambda: zl(8, 1), 50: lambda: kvl(P(0), 0, 'kx', 's4'), 51: lambda: kvl(P(0)+4, 1024, 'kx', 's4'),
             55: lambda: flags(), 57: lambda: zload(9), 59: lambda: zload(10)}
    for k_, n_ in enumerate((36, 40, 42, 14, 15, 18, 20, 23, 24, 26, 30)): after[n_] = (lambda t: (lambda: A(t)))(sal[k_])
    def sm(n, acc, af):
        f = ORD[n]; kind, i = LOC[f]
        if kind == 'Z': A.wait(vm=('Z', i)); b = v(P(ZP[n]), 8)
        elif kind == 'L': A.wait(lg=('L', i)); b = v(P(4+i % 2), 8)
        else: b = R(i, 8)
        A('v_smfmac_f32_16x16x64_bf16 %s, %s, %s, v%d' % (v(acc, 4), v(af, 4), b, rIDX))
        if kind == 'L' and i+2 < 18 and i+2 not in (12, 13): lload(i+2)
        if n in after: after[n]()
    def cvt(d, s_, s2=None): A('v_cvt_pk_bf16_f32 v%d, v%d, v%d' % (d, s_, s_+1 if s2 is None else s2))
    def zero(b, n):
        for i in range(0, n, 2): A('v_mov_b64 %s, 0' % v(b+i, 2))
    DPP = 'row_ror:8 row_mask:0xf bank_mask:0xf'
    def bg(n=1):
        for _ in range(n):
            k = st['k']
            A.wait(lg=('A', 7+k))
            for t in range(2): sm(46+2*k+t, AV+4*t, AF+((7+k) % 3)*4)
            if k+3 < 7: aload(10+k)
            st['k'] += 1
    def flags(): A('v_lshrrev_b32 v%d, 2, v%d\n buffer_load_dword v%d, v%d, %s, s71 offen sc1' % (rT, rL, rFL, rT, WS))
    A('%s_PAIR:' % nm); set_pb(A)
    A('s_lshl_b32 s3, %s, 14\n s_add_u32 s54, s3, %s\n s_add_u32 s54, s54, 0x%x\n s_lshl_b32 s59, %s, 12\n s_add_u32 %s, s54, s59\n s_add_u32 s3, s3, s59' % (sH, sPB, O_KV, sW, sKVB))
    A('s_lshr_b32 s3, s3, 1\n s_add_u32 %s, s3, %s\n s_add_u32 %s, %s, 0x%x' % (sKMB, sPB, sKMB, sKMB, O_KM))
    A('s_lshl_b32 s3, %s, 13\n s_lshl_b32 s59, %s, 8\n s_add_u32 %s, s3, s59\n s_add_u32 s71, %s, %d\n s_add_u32 %s, %s, %d\n s_mov_b32 %s, 0' % (sPAIR, sH, sFB, sFB, F_KV, sFB, sFB, F_KM, sS))
    A('s_sub_u32 s31, %s, 4\n s_cmp_eq_u32 %s, 3\n s_cselect_b32 s31, s31, 0x%x' % (sFB, sW, WSB))
    A('v_bfe_u32 v16, v%d, 5, 3\n v_mul_u32_u24 v16, 1280, v16\n v_lshrrev_b32 v17, 8, v%d\n v_lshl_add_u32 v16, v17, 5, v16\n v_and_b32 v17, 16, v%d\n v_add_u32 v16, v16, v17' % (rL, rL, rL))
    A('s_lshl_b32 s3, %s, 8\n s_lshr_b32 s59, s55, 3' % sW)
    A('buffer_load_dwordx4 %s, v16, s[24:27], s3 offen\n buffer_load_dwordx4 %s, v16, s[24:27], s3 offen offset:128\n buffer_load_dwordx4 %s, v16, s[24:27], s59 offen' % (v(AF, 4), v(AF+4, 4), v(AF+8, 4)))
    for i in range(5): zload(i)
    poll(A, 's71', '1', 16, 3, 0); zero(AQ, 24); kvl(P(0), 0, 'kx', sKVB); kvl(P(0)+4, 1024, 'kx', sKVB)
    A('v_mov_b32 v%d, 0\n s_waitcnt vmcnt(0) lgkmcnt(0)' % rFL)
    if DBG: A('s_mov_b32 s100, 0\n s_mov_b32 s98, 0\n' + '\n'.join('s_mov_b32 s%d, 0' % x for x in AC_))
    A('%s_STEP:' % nm); st['loop'] = 1
    A.vq = []; A.lq = []
    A('v_add_u32 v%d, s55, v%d' % (rT, rL))
    A('ds_write_b128 v%d, %s\n ds_write_b128 v%d, %s offset:1024\n ds_write_b128 v%d, %s' % (rW2, v(AF, 4), rW2, v(AF+4, 4), rT, v(AF+8, 4)), tag='mw')
    if DBG:
        ts(8); A('s_waitcnt lgkmcnt(0)\n s_cmp_lt_u32 %s, 4\n s_cbranch_scc1 %s_NA' % (sS, nm))
        for i in range(8): A('s_sub_u32 s3, s%d, s%d\n s_add_u32 s%d, s%d, s3' % (80+2*i, 78+2*i, AC_[i], AC_[i]))
        A('%s_NA:' % nm); ts(0)
    st['k'] = 0
    for n in range(18):
        sm(n, AQ + (n % 6)*4, AF + (n//6)*4)
        if n == 6: A('v_cmp_ne_u32 s[48:49], 0, v%d\n s_lshl_b32 s72, %s, 19\n s_add_u32 s72, s72, %s' % (rFL, '0' if 'KVHOT' in X_ else sS, sKVB))
        if n == 5: A.wait(lg='mw'); A('s_barrier')
        if n % 6 == 5: aload(n//6)
    for n in range(18, 46):
        i = (n-18)//4
        if n % 4 == 2: A.wait(lg=('A', i))
        sm(n, AQ + ((n-18) % 4)*4, AF + (i % 3)*4)
        if n % 4 == 1: aload(i+3)
    ts(1); bg(1)
    for b in (AQ, AQ+8):
        for k in range(4): cvt(b+k, b+2*k)
        A('v_mfma_f32_16x16x32_bf16 %s, %s, %s, 0' % (v(b+4, 4), v(b, 4), v(SEL, 4)))
    bg(1)
    cvt(AQ, AQ+4); cvt(AQ+1, AQ+6); cvt(AQ+2, AQ+12); cvt(AQ+3, AQ+14)
    SD = (P(4), P(4)+4, AQ+8)
    for d, src in zip(SD, (P(0), P(0)+4, AQ)): A('v_mfma_f32_16x16x32_bf16 %s, %s, %s, 0' % (v(d, 4), v(src, 4), v(AQ, 4)))
    bg(1)
    A('s_mov_b64 exec, s[50:51]')
    for t in range(3): A('ds_write_b128 v%d, %s offset:%d' % (rSW, v(SD[t], 4), SCB + t*2048), tag='sw')
    A('s_mov_b64 exec, -1\n v_mov_b32 v%d, s57\n v_mov_b32 v%d, s57' % (AQ+12, AQ+13))
    bg(1); rst(0); rst(1)
    A.wait(lg='sw'); A('s_barrier'); ts(2)
    for w in range(4): A('ds_read_b128 %s, v%d offset:%d' % (v(P(4)+4*w, 4), rSR, SCB + w*512), tag=('sr', w))
    for w in range(4): A('ds_read_b32 v%d, v%d offset:%d' % (AQ+4+w, rSR2, SCB + 4096 + 256 + w*512), tag='sm')
    bg(1); rst(2); rst(3); rst(4)
    if 'NOKM' not in X_: A('s_not_b64 exec, s[50:51]\n buffer_store_dwordx4 %s, v%d, %s, s6 offen sc1\n s_mov_b64 exec, -1' % (v(AQ, 4), rL, WS))
    bg(2)
    S = P(4); E = AQ+12; PX = P(5); L_ = AQ+8
    A.wait(lg=('sr', 1))
    for j in range(4): A('v_add_f32 v%d, v%d, v%d' % (S+j, S+j, S+4+j))
    A.wait(lg=('sr', 3))
    for j in range(4): A('v_add_f32 v%d, v%d, v%d' % (S+8+j, S+8+j, S+12+j))
    A.wait(lg='sm')
    A('v_add_f32 v%d, v%d, v%d\n v_add_f32 v%d, v%d, v%d' % (AQ+4, AQ+4, AQ+5, AQ+6, AQ+6, AQ+7))
    for j in range(4): A('v_add_f32 v%d, v%d, v%d' % (S+j, S+j, S+8+j))
    A('v_add_f32 v%d, v%d, v%d\n v_mul_f32 v%d, s70, v%d' % (AQ+4, AQ+4, AQ+6, AQ+4, AQ+4))
    for k in range(4): cvt(AV+k, AV+2*k)
    if 'NOKM' not in X_: A('buffer_store_dwordx4 %s, v%d, %s, s6 offen offset:1024 sc1' % (v(AV, 4), rL, WS))
    A.wait(vm='vx')
    A('%s_EXP:' % nm)
    for j in range(4): A('v_exp_f32 v%d, v%d' % (E+j, S+j))
    A('v_exp_f32 v%d, v%d' % (AQ+5, AQ+4))
    cvt(PX, E); cvt(PX+1, E+2); cvt(PX+4, AQ+5, AQ+5)
    A('v_add_f32 v%d, v%d, v%d' % (L_, E, E+1))
    A('v_mov_b32_dpp v%d, v%d %s\n v_mov_b32_dpp v%d, v%d %s\n v_mov_b32_dpp v%d, v%d %s' % (PX+2, PX, DPP, PX+3, PX+1, DPP, PX+5, PX+4, DPP))
    A('v_add_f32 v%d, v%d, v%d\n v_add_f32 v%d, v%d, v%d' % (L_+1, E+2, E+3, L_, L_, AQ+5))
    ts(3)
    for t in range(2): A('v_mfma_f32_16x16x32_bf16 %s, %s, %s, 0' % (v(AF+4*t, 4), v(P(1)+4*t, 4), v(PX, 4)))
    A('v_add_f32 v%d, v%d, v%d' % (L_, L_, L_+1))
    for t in range(2): A('v_mfma_f32_16x16x16_bf16 %s, %s, %s, %s' % (v(AF+4*t, 4), v(AV+2*t, 2), v(PX+4, 2), v(AF+4*t, 4)))
    A('v_add_f32_dpp v%d, v%d, v%d %s' % (L_, L_, L_, DPP))
    xmax(A, L_, L_+1, 'v_add_f32')
    A('v_med3_f32 v%d, v%d, s60, v%d' % (L_+1, L_, L_) if 0 else 'v_mov_b32 v%d, s61\n v_rcp_f32 v%d, v%d\n v_med3_f32 v%d, v%d, s60, v%d\n v_cmp_neq_f32 vcc, v%d, v%d' % (L_+1, L_+2, L_, L_+1, L_, L_+1, L_, L_+1))
    for j in range(0, 8, 2): A('v_pk_mul_f32 %s, %s, %s op_sel_hi:[1,0]' % (v(AF+j, 2), v(AF+j, 2), v(L_+2, 2)))
    A('s_cbranch_vccnz %s_FB ; nf\n%s_OK:' % (nm, nm))
    for k in range(4): cvt(AF+8+k, AF+2*k)
    A('s_mov_b64 exec, s[50:51]'); A('ds_write_b128 v%d, %s offset:8192' % (rSW, v(AF+8, 4)), tag='ow'); A('s_mov_b64 exec, -1')
    lload(12); lload(13)
    A('s_mov_b64 exec, 1\n buffer_store_dword v%d, v%d, %s, s5 offen sc1\n s_mov_b64 exec, -1' % (rIDX, rL, WS))
    A('s_cmp_eq_u32 %s, 63\n s_cbranch_scc1 %s_LAST ; nf' % (sS, nm))
    A.wait(lg='ow'); A('s_barrier'); ts(4)
    for k in range(2): A('ds_read_b128 %s, v%d offset:%d' % (v(AF+4*k, 4), rL, 8192 + k*1024), tag=('O', k))
    zero(AQ, 24)
    def fin(u):
        b = AQ + (u % 3)*8; d = AF + 8 + (u & 1)*2
        o = ['v_add_f32 v%d, v%d, v%d' % (b+2*j, b+2*j, b+2*j+1) for j in range(4)]
        o += ['v_cvt_pk_bf16_f32 v%d, v%d, v%d' % (d+t, b+4*t, b+4*t+2) for t in range(2)]
        o += ['buffer_store_dwordx2 %s, v%d, %s, %s offen offset:%d%s' % (v(d, 2), rPS, WS, (sP, 's73', 's74')[u >> 1], (u & 1)*2048, sc)]
        if u < 2: o += ['v_mov_b64 %s, 0' % v(b+j, 2) for j in range(0, 8, 2)]
        return o
    pend = []
    for u in range(5):
        for q in range(4):
            k, t = q >> 1, q & 1
            A.wait(lg=('O', k))
            sm(60+u*4+q, AQ+(u % 3)*8+4*t, AF+4*k)
            if q == 1 and u: pend += fin(u-1)
            for _ in range(3):
                if pend: A(pend.pop(0))
    for x in pend + fin(4): A(x)
    ts(5)
    A('s_cmp_ge_u32 %s, 80\n s_cbranch_scc1 %s_NR ; nf' % (sRID, nm))
    def pa():
        for i, so in enumerate((sP, 's75', 's76', 's77')): A('buffer_load_dwordx4 %s, v%d, %s, %s offen sc1' % (v(AQ+4*i, 4), rRL, WS, so), tag=('pa', i))
    for i in range(DLA): A('s_nop 7')
    pa()
    for i in range(5): zload(i)
    A.wait(vm=('pa', 3))
    A('%s_PAC:' % nm)
    D = AF
    for i in range(4): A('v_mfma_f32_16x16x32_bf16 %s, %s, %s, %s' % (v(D, 4), v(RSEL, 4), v(AQ+4*i, 4), v(D, 4) if i else '0'))
    A('v_mov_b32 v%d, s57' % (AF+4))
    A('v_add_f32_dpp v%d, v%d, v%d %s\n v_add_f32_dpp v%d, v%d, v%d %s\n s_mov_b64 exec, s[50:51]' % (D, D, D, DPP, D+1, D+1, D+1, DPP))
    A('v_cmp_u_f32 vcc, v%d, v%d' % (D, D+1)); cvt(D, D)
    A('s_cbranch_vccnz %s_PAR ; nf\n%s_PAOK:' % (nm, nm))
    A('buffer_store_dword v%d, v%d, %s, %s offen%s\n buffer_store_dword v%d, v%d, %s, %s offen%s\n s_mov_b64 exec, -1' % (D, rMS, WS, sM, sc, AF+4, rMS, WS, sMO, sc))
    A('s_branch %s_PB0\n%s_NR:' % (nm, nm))
    for i in range(DLA+1): A('s_nop 7')
    for i in range(5): zload(i)
    A('s_waitcnt vmcnt(0)\n%s_PB0:' % nm); ts(6)
    zero(AQ, 24)
    for i in range(DLB): A('s_nop 7')
    A('%s_PB:\n buffer_load_dwordx4 %s, v%d, %s, %s offen sc1\n buffer_load_dwordx4 %s, v%d, %s, %s offen offset:1024 sc1\n buffer_load_dwordx4 %s, v%d, %s, s7 offen sc1' % (nm, v(AF, 4), rW2, WS, sM, v(AF+4, 4), rW2, WS, sM, v(AF+8, 4), rL, WS))
    A('s_waitcnt vmcnt(2) lgkmcnt(0)\n v_max3_u32 v%d, v%d, v%d, v%d\n s_waitcnt vmcnt(1)\n v_max3_u32 v%d, v%d, v%d, v%d\n v_max3_u32 v%d, v%d, v%d, v%d' % (rT, AF, AF+1, AF+2, rT, rT, AF+3, AF+4, rT, rT, AF+5, AF+6))
    A('s_waitcnt vmcnt(0)\n v_max3_u32 v%d, v%d, v%d, v%d\n v_max3_u32 v%d, v%d, v%d, v%d\n v_max_u32 v%d, v%d, v%d' % (rT, rT, AF+7, AF+8, rT, rT, AF+9, AF+10, rT, rT, AF+11))
    A('v_cmp_le_u32 vcc, s63, v%d\n s_cbranch_vccnz %s_PBR ; nf\n%s_PBOK:' % (rT, nm, nm)); ts(7)
    A('s_sub_u32 %s, 0x%x, %s\n s_mov_b32 %s, %s\n s_add_u32 %s, %s, 10240\n s_cmp_eq_u32 %s, 0x%x\n s_cselect_b32 %s, 0x%x, %s\n s_add_u32 %s, %s, 1' % (sP, 2*RING_P+327680, sP, sMO, sM, sM, sM, sM, RING_M+30720, sM, RING_M, sM, sS, sS))
    A('s_branch %s_STEP ; nf' % nm)
    def anyeq(b, n):
        A('s_mov_b64 s[96:97], 0')
        for k in range(n): A('v_cmp_eq_u32 vcc, s57, v%d\n s_or_b64 s[96:97], s[96:97], vcc' % (b+k))
        A('s_cmp_eq_u64 s[96:97], 0')
    A('%s_PBR:\n v_cmp_eq_u32 vcc, s57, v%d\n s_cbranch_vccnz %s_PBR2' % (nm, rT, nm)); anyeq(AF, 12); A('s_cbranch_scc1 %s_PBOK\n%s_PBR2:' % (nm, nm))
    if DBG: A('s_add_u32 s98, s98, 1')
    A('s_add_u32 s99, s99, 1\n s_cmp_lt_u32 s99, 0x%x\n s_cbranch_scc1 %s_PB\n s_branch %s_PBOK' % (SPIN, nm, nm))
    A('%s_PAR:\n s_mov_b64 exec, -1' % nm); anyeq(AQ, 16); A('s_mov_b64 exec, s[50:51]\n s_cbranch_scc1 %s_PAOK' % nm)
    if DBG: A('s_add_u32 s100, s100, 1')
    A('s_add_u32 s99, s99, 1\n s_cmp_ge_u32 s99, 0x%x\n s_cbranch_scc1 %s_PAOK\n s_mov_b64 exec, -1' % (SPIN, nm))
    pa(); A('s_waitcnt vmcnt(0)\n s_branch %s_PAC' % nm)
    A('%s_WKV:' % nm); flags()
    A('s_waitcnt vmcnt(0)\n v_cmp_ne_u32 s[48:49], 0, v%d\n s_bitcmp1_b64 s[48:49], s4\n s_cbranch_scc1 %s_KVOK' % (rFL, nm))
    A('s_add_u32 s99, s99, 1\n s_cmp_lt_u32 s99, 0x%x\n s_cbranch_scc1 %s_WKV\n s_branch %s_KVOK' % (SPIN, nm, nm))
    A('%s_FB:\n s_cmp_lg_u32 s58, 0\n s_cbranch_scc1 %s_OK\n s_mov_b32 s58, 1' % (nm, nm))
    A('v_max3_f32 v%d, v%d, v%d, v%d\n v_max3_f32 v%d, v%d, v%d, v%d\n v_max_f32_dpp v%d, v%d, v%d %s' % (L_, S, S+1, S+2, L_, L_, S+3, AQ+4, L_, L_, L_, DPP))
    xmax(A, L_, L_+1, 'v_max_f32')
    for r in (S, S+1, S+2, S+3, AQ+4): A('v_sub_f32 v%d, v%d, v%d' % (r, r, L_))
    A('s_branch %s_EXP' % nm)
    A('%s_LAST:\n s_waitcnt vmcnt(0) lgkmcnt(0)\n s_barrier' % nm)
    if DBG:
        for i, x in enumerate(AC_ + [100, 98]): A('v_mov_b32 v%d, s%d' % (16+i, x))
        A('s_mul_i32 s3, %s, 16\n s_add_u32 s3, s3, 160\n s_cmp_eq_u32 %s, 5\n s_cselect_b32 s3, s3, 0x1000\n s_cmp_eq_u32 %s, 1\n s_cselect_b32 s3, 0x1000, s3\n s_cmp_eq_u32 %s, 2\n s_cselect_b32 s3, 0x1000, s3\n v_mov_b32 v28, s3' % (sW, sH, sW, sW))
        A('buffer_store_dwordx4 v[16:19], v28, s[20:23], 0 offen\n buffer_store_dwordx4 v[20:23], v28, s[20:23], 0 offen offset:16\n buffer_store_dwordx2 v[24:25], v28, s[20:23], 0 offen offset:32\n s_waitcnt vmcnt(0)')
    A('s_add_u32 s49, %s, 252' % sFB); signal(A, 's49', 16, False)
    A('s_nop 7\n s_nop 7'); next_pair(A, nm)
```

```python
from k_roles1 import *
def role_AT(A):
    SA, SB, NM, O, P, Q, QN = 32, 48, 64, 80, 96, 104, 112
    sTOK, sCNT, sRED = 's32', 's33', 's34'
    A('ROLE_AT:\n s_and_b32 s3, %s, %d\n s_cbranch_scc0 AT_BODY\n s_cmp_lg_u32 %s, 0\n s_cbranch_scc1 AT_BODY\n s_cmp_ge_u32 %s, %d\n s_cbranch_scc1 AT_BODY' % (sMASK, M_P1, sPAIR, sIDX, (N_AT//3)*3))
    A('s_add_u32 s19, %s, 6\n s_mov_b32 %s, 1\n s_branch P1_BODY' % (sIDX, sRET))
    A('AT_BODY:\n s_and_b32 s3, %s, %d\n s_cbranch_scc0 EXIT2' % (sMASK, M_AT))
    A('v_and_b32 v16, 31, v0\n v_lshrrev_b32 v17, 5, v0\n v_mul_u32_u24 v18, 40, v16\n v_lshl_add_u32 v1, v17, 4, v18\n v_add_u32 v2, 32, v18\n v_lshl_add_u32 v2, v17, 30, v2')
    A('v_lshlrev_b32 v3, 4, v0\n s_lshl_b32 s3, %s, 16\n v_add_u32 v3, s3, v3' % sW)
    A('v_mul_u32_u24 v5, 112, v16\n v_lshl_add_u32 v5, v17, 4, v5\n s_mul_i32 s3, %s, 3584\n v_add_u32 v5, s3, v5' % sW)
    for k in range(3):
        A('v_add_u32 v18, %d, v0\n v_min_u32 v18, 159, v18\n v_mul_u32_u24 v19, 205, v18\n v_lshrrev_b32 v19, 10, v19\n v_mul_u32_u24 v20, 5, v19\n v_sub_u32 v20, v18, v20' % (64*k))
        A('v_mul_u32_u24 v%d, 112, v19\n v_lshl_add_u32 v%d, v20, 4, v%d' % (10+k, 6+k, 10+k))
    A('v_lshlrev_b32 v9, 3, v0\n v_mov_b32 v%d, 0\n v_mov_b32 v%d, 0\n v_cmp_eq_u32 s[50:51], 20, v16\n s_mov_b32 %s, 0' % (Q+6, Q+7, sCNT))
    A('s_mov_b32 s35, 14336')
    A('AT_PAIR:'); set_pb(A)
    A('s_lshl_b32 s49, %s, 7\n s_add_u32 s49, s49, %d' % (sPAIR, F_E1))
    A('s_cmp_lt_u32 %s, 3\n s_cselect_b32 s3, %s, 0\n s_lshl_b32 s3, s3, 3\n s_sub_u32 s37, 192, s3' % (sW, sPAIR))
    poll(A, 's49', 's37', 14, 58)
    A('s_mov_b32 %s, %s\n s_mul_i32 s3, %s, 1280\n s_add_u32 s3, s3, %s' % (sTOK, sIDX, sTOK, sPB))
    A('buffer_load_dwordx4 %s, v1, %s, s3 offen sc1\n buffer_load_dwordx2 %s, v2, %s, s3 offen sc1' % (v(QN, 4), WS, v(QN+4, 2), WS))
    A('s_add_u32 s36, %s, 0x%x' % (sPB, O_KP))
    for i in range(16):
        for k in range(4): A('buffer_load_dwordx4 %s, v3, %s, s36 offen offset:%d sc1' % (a((k >> 1)*128+i*8+(k & 1)*4, 4), WS, k*1024))
        A('s_add_u32 s36, s36, 4096')
        if i == 11: A('s_waitcnt vmcnt(10)')
    def qk(i, d, c):
        A('v_mfma_f32_32x32x16_bf16 %s, %s, %s, %s' % (v(d, 16), a(i*8, 4), v(Q, 4), c))
        return 'v_mfma_f32_32x32x16_bf16 %s, %s, %s, %s' % (v(d, 16), a(i*8+4, 4), v(Q+4, 4), v(d, 16))
    def tmax(d, first):
        A(('v_max3_f32 v16, v%d, v%d, v%d' % (d, d+1, d+15)) if first else ('v_max3_f32 v16, v16, v%d, v%d\n v_max_f32 v16, v16, v%d' % (d, d+1, d+15)))
        for k in range(1, 7): A('v_max3_f32 v16, v16, v%d, v%d' % (d+2*k, d+2*k+1))
        A('v_max_f32 v16, v16, v%d' % (d+14))
    A('AT_TOK:\n s_waitcnt vmcnt(0)')
    for k in range(6): A('v_mov_b32 v%d, v%d' % (Q+k, QN+k))
    A('s_add_u32 s3, %s, %d\n s_min_u32 s3, s3, 2047\n s_mul_i32 s3, s3, 1280\n s_add_u32 s3, s3, %s' % (sTOK, N_AT, sPB))
    A('buffer_load_dwordx4 %s, v1, %s, s3 offen sc1\n buffer_load_dwordx2 %s, v2, %s, s3 offen sc1\n s_mov_b32 %s, 0' % (v(QN, 4), WS, v(QN+4, 2), WS, sRED))
    A(qk(0, SA, '0')); tmax(SA, True)
    A('AT_HAVEM:\n v_mov_b32 v17, v16\n v_permlane32_swap_b32 v16, v17\n v_max_f32 v16, v16, v17')
    for r in range(16): A('v_sub_f32 v%d, 0, v16' % (NM+r))
    A(qk(0, SA, v(NM, 16)))
    for i in range(16):
        S = (SA, SB)[i & 1]; N = (SB, SA)[i & 1]
        ex = lambda lo, hi: [A('v_exp_f32 v%d, v%d' % (S+r, S+r)) for r in range(lo, hi)]
        cv = lambda lo, hi: [A('v_cvt_pk_bf16_f32 v%d, v%d, v%d' % (P+k, S+2*k, S+2*k+1)) for k in range(lo, hi)]
        pv = lambda t: A('v_mfma_f32_32x32x16_bf16 %s, %s, %s, %s' % (v(O, 16), a(128+i*8+t*4, 4), v(P+4*t, 4), '0' if (i == 0 and t == 0) else v(O, 16)))
        nx = qk(i+1, N, v(NM, 16)) if i < 15 else None
        ex(0, 4)
        if nx: A(nx)
        ex(4, 8); cv(0, 4); ex(8, 10); pv(0); ex(10, 16); cv(4, 8); A('s_nop 1'); pv(1)
    A('v_mov_b32 v18, 0x71800000\n v_cmp_nlt_f32 vcc, v%d, v18\n s_cmp_lg_u32 %s, 0\n s_cbranch_scc1 AT_OK\n s_cmp_eq_u32 vcc_hi, 0\n s_cbranch_scc1 AT_OK' % (O+8, sRED))
    for i in range(16): A(qk(i, SA, '0')); tmax(SA, i == 0)
    A('s_mov_b32 %s, 1\n s_branch AT_HAVEM\nAT_OK:' % sRED)
    for k in range(3): A('ds_write_b128 v5, %s offset:%d' % (v(O+4*k, 4), 32*k))
    A('s_mov_b64 exec, 0xffffffff\n ds_write_b32 v5, v16 offset:96\n s_mov_b64 exec, -1\n s_waitcnt lgkmcnt(0)\n s_barrier')
    A('s_and_b32 s3, %s, 3\n s_cmp_lg_u32 s3, %s\n s_cbranch_scc1 AT_NEXT' % (sCNT, sW))
    A('s_mul_i32 s36, %s, 1280\n s_add_u32 s36, s36, %s\n s_add_u32 s36, s36, 0x%x' % (sTOK, sPB, O_OA))
    for k in range(3):
        b = 32 + k*24
        for w in range(4):
            A('ds_read_b128 %s, v%d offset:%d\n ds_read_b32 v%d, v%d offset:%d\n ds_read_b32 v%d, v%d offset:%d' % (v(b+4*w, 4), 6+k, w*3584, b+16+w, 10+k, w*3584+80, b+20+w, 10+k, w*3584+96))
        A('s_waitcnt lgkmcnt(0)')
    for k in range(3):
        b = 32 + k*24
        A('v_max3_f32 v18, v%d, v%d, v%d\n v_max_f32 v18, v18, v%d' % (b+20, b+21, b+22, b+23))
        for w in range(4): A('v_sub_f32 v%d, v%d, v18\n v_exp_f32 v%d, v%d' % (b+20+w, b+20+w, b+20+w, b+20+w))
        A('v_mul_f32 v19, v%d, v%d' % (b+16, b+20))
        for w in range(1, 4): A('v_fmac_f32 v19, v%d, v%d' % (b+16+w, b+20+w))
        A('v_rcp_f32 v19, v19')
        for j in range(4):
            A('v_mul_f32 v%d, v%d, v%d' % (b+j, b+j, b+20))
            for w in range(1, 4): A('v_fmac_f32 v%d, v%d, v%d' % (b+j, b+4*w+j, b+20+w))
            A('v_mul_f32 v%d, v%d, v19' % (b+j, b+j))
        A('v_cvt_pk_bf16_f32 v%d, v%d, v%d\n v_cvt_pk_bf16_f32 v%d, v%d, v%d' % (20+2*k, b, b+1, 21+2*k, b+2, b+3))
        if k == 2: A('s_mov_b64 exec, 0xffffffff')
        A('buffer_store_dwordx2 %s, v9, %s, s36 offen offset:%d sc1' % (v(20+2*k, 2), WS, k*512))
    A('s_lshr_b32 s3, %s, 5\n s_lshl_b32 s3, s3, 7\n s_lshl_b32 s49, %s, 13\n s_add_u32 s49, s49, s3\n s_add_u32 s49, s49, %d' % (sTOK, sPAIR, F_E2))
    A('s_mov_b64 exec, 1\n v_mov_b32 v14, 0\n v_mov_b32 v15, 1\n s_waitcnt vmcnt(0)\n buffer_atomic_add v15, v14, %s, s49 offen sc1' % WS); stamp(A, 's49', 15, 14); A('s_mov_b64 exec, -1')
    A('AT_NEXT:')
    for r in (5, 6, 7, 8, 10, 11, 12): A('v_add_u32 v%d, s35, v%d' % (r, r))
    A('s_sub_u32 s35, 0, s35\n s_add_u32 %s, %s, 1\n s_add_u32 %s, %s, %d\n s_cmp_lt_u32 %s, 2048\n s_cbranch_scc1 AT_TOK' % (sCNT, sCNT, sTOK, sTOK, N_AT, sTOK))
    A('s_add_u32 %s, %s, 1\n s_cmp_lt_u32 %s, %s\n s_cbranch_scc1 AT_PAIR\nEXIT2:\n s_endpgm' % (sPAIR, sPAIR, sPAIR, sPEND))
```

```python
from k_roles1 import *
def xmax(A, x, y, op):
    for sw in ('32', '16'):
        A('v_mov_b32 v%d, v%d\n v_permlane%s_swap_b32 v%d, v%d\n %s v%d, v%d, v%d' % (y, x, sw, x, y, op, x, x, y))

HOLD = os.environ.get('HOLD', '1')
def role_QA(A):
    QX = 86016
    KX, KM, VX, VM, QF, S, P, O = 16, 48, 64, 112, 128, 144, 156, 16
    A('ROLE_QA:\n s_and_b32 s3, %s, %d\n s_cbranch_scc0 QA_BODY\n s_cmp_lg_u32 %s, 0\n s_cbranch_scc1 QA_BODY\n s_cmp_ge_u32 %s, %d\n s_cbranch_scc1 QA_BODY' % (sMASK, M_P1, sPAIR, sIDX, 3*NQH))
    A('s_add_u32 s19, %s, %d\n s_mov_b32 %s, 2\n s_branch P1_BODY' % (sIDX, 6 + (N_AT//3)*3, sRET))
    A('QA_BODY:\n s_and_b32 s3, %s, %d\n s_cbranch_scc0 EXIT2\n s_barrier' % (sMASK, M_QA))
    A('s_and_b32 s19, %s, 15\n s_lshr_b32 %s, %s, 4\n s_mov_b32 %s, %d\n s_mov_b32 %s, 0' % (sIDX, sSEG0, sIDX, sSTEP, N_QA//16, sVAR)); ws_common(A)
    ldptr(A, 28, K_BWQ, 640*8192)
    A('s_lshl_b32 s65, s19, 9\n s_lshl_b32 s3, %s, 7\n s_add_u32 s65, s65, s3' % sW)
    ws_wload(A, 8192, 's65'); colsum(A, True)
    copy_ws(A, 24); src_pattern(A, False, vDS, sFS)
    A('s_lshr_b32 s3, %s, 1\n s_lshl_b32 s64, s19, 1\n s_add_u32 s64, s64, s3\n s_and_b32 s65, %s, 1' % (sW, sW))
    A('s_lshl_b32 s3, s3, 13\n s_add_u32 s3, s3, %d\n s_lshl_b32 s59, s65, 11\n s_add_u32 s59, s59, s3\n v_add_u32 v%d, s59, v%d' % (QX, vST, vL))
    A('s_lshl_b32 s59, s65, 12\n s_add_u32 s59, s59, s3\n v_add_u32 v%d, s59, v%d' % (vRS, vL))
    A('v_and_b32 v16, 15, v0\n s_lshl_b32 s3, s65, 4\n v_add_u32 v16, s3, v16\n v_lshrrev_b32 v17, 4, v0\n v_lshlrev_b32 v17, 2, v17\n v_sub_u32 v16, v16, v17')
    for t in range(2):
        for j in range(4): A('v_cmp_le_i32 s[%d:%d], %d, v16' % (66+8*t+2*j, 67+8*t+2*j, 16*t+j))
    A('v_mov_b32 v180, 0xf149f2ca\n v_bfe_u32 v16, v0, 1, 3\n v_and_b32 v17, 48, v0\n v_add_u32 v16, v16, v17\n v_add_u32 v16, 8, v16\n v_lshlrev_b32 v181, 4, v16')
    def setup():
        A('s_lshl_b32 s3, %s, 13\n s_add_u32 %s, s3, %d\n s_add_u32 %s, s3, %d\n s_mov_b32 %s, 3\n s_add_u32 %s, %s, 0x%x' % (sPAIR, sFIN, F_E3, sFOUT, F_E6, sTGT, sSRC, sPB, O_X1))
        A('s_lshl_b32 s59, s64, 8\n s_add_u32 s82, s3, s59')
        A('s_lshl_b32 s3, s64, 14\n s_add_u32 s83, s3, %s\n s_add_u32 s83, s83, 0x%x' % (sPB, O_KV))
        A('s_lshl_b32 s3, s64, 13\n s_add_u32 s84, s3, %s\n s_add_u32 s84, s84, 0x%x' % (sPB, O_KM))
        A('s_lshl_b32 s3, s64, 12\n s_lshl_b32 s59, s65, 17\n s_add_u32 s3, s3, s59\n s_add_u32 s3, s3, %s\n s_add_u32 %s, s3, 0x%x' % (sPB, sOUT, O_OB))
    def body():
        gemm(A, True, 4, True); stats(A, True); lnfix(A, True, 4)
        for mt in range(2):
            for u in range(2):
                d = 20 + (mt*2+u)*4; packT(A, mt, u, d)
                A('ds_write_b128 v%d, %s offset:%d' % (vST, v(d, 4), mt*4096 + u*1024))
        A('s_waitcnt lgkmcnt(0)\n s_barrier')
        for ks in range(4): A('ds_read_b128 %s, v%d offset:%d' % (v(QF+4*ks, 4), vRS, ks*1024))
        A('s_lshl_b32 s85, %s, 2\n s_add_u32 s85, s85, s82\n s_add_u32 s49, s85, %d' % (sSEG, F_KV))
        poll(A, 's49', '1', vP, 58)
        A('s_lshl_b32 s49, %s, 19\n s_add_u32 s49, s49, s83' % sSEG)
        for ks in range(4):
            for b in range(4): A('buffer_load_dwordx4 %s, v%d, %s, s49 offen offset:%d sc1' % (v(KX+(b*4+ks)*4 if b < 2 else VX+(ks*2+b-2)*4, 4), vL, WS, b*1024))
            A('s_add_u32 s49, s49, 4096')
        A('s_add_u32 s49, s85, %d' % F_KM)
        poll(A, 's49', '1', vP, 58)
        A('s_lshl_b32 s49, %s, 18\n s_add_u32 s49, s49, s84\n s_add_u32 s59, s49, 4096' % sSEG)
        for ks in range(4): A('buffer_load_dwordx4 %s, v%d, %s, s%d offen offset:%d sc1' % (v(KM+4*ks, 4), 181, WS, (49, 59)[ks >> 1], (ks & 1)*2048), tag='km')
        for ks in range(4): A('buffer_load_dwordx4 %s, v%d, %s, s%d offen offset:%d sc1' % (v(VM+4*ks, 4), vL, WS, (49, 59)[ks >> 1], (ks & 1)*2048+1024))
        A('s_waitcnt lgkmcnt(0)')
        for ks in range(4):
            for t in range(2): A('v_mfma_f32_16x16x32_bf16 %s, %s, %s, %s' % (v(S+4+4*t, 4), v(KX+(t*4+ks)*4, 4), v(QF+4*ks, 4), v(S+4+4*t, 4) if ks else '0'))
        for k in range(8): A('v_cndmask_b32 v%d, v180, v%d, s[%d:%d]' % (S+4+k, S+4+k, 66+2*k, 67+2*k))
        A.wait(vm='km')
        for ks in range(4): A('v_mfma_f32_16x16x32_bf16 %s, %s, %s, %s' % (v(S, 4), v(KM+4*ks, 4), v(QF+4*ks, 4), v(S, 4) if ks else '0'))
        A('v_max3_f32 v162, v%d, v%d, v%d' % (S+4, S+5, S+6))
        for k in (7, 9): A('v_max3_f32 v162, v162, v%d, v%d' % (S+k, S+k+1))
        for k in range(4): A('v_mul_f32 v%d, 0x%x, v%d' % (S+k, f2u(SC_B), S+k))
        A('v_max3_f32 v162, v162, v%d, v%d\n v_max3_f32 v162, v162, v%d, v%d\n v_max_f32 v162, v162, v%d' % (S+11, S, S+1, S+2, S+3))
        xmax(A, 162, 163, 'v_max_f32')
        for k in range(12): A('v_sub_f32 v%d, v%d, v162' % (S+k, S+k))
        for k in range(12): A('v_exp_f32 v%d, v%d' % (S+k, S+k))
        A('v_add_f32 v162, v%d, v%d\n v_add_f32 v163, v%d, v%d\n v_add_f32 v162, v162, v163\n v_mul_f32 v162, 0.5, v162' % (S, S+1, S+2, S+3))
        for k in range(4, 12): A('v_add_f32 v162, v162, v%d' % (S+k))
        xmax(A, 162, 163, 'v_add_f32')
        A('v_rcp_f32 v162, v162')
        for k in range(12): A('v_mul_f32 v%d, v%d, v162' % (S+k, S+k))
        for k in range(6): A('v_cvt_pk_bf16_f32 v%d, v%d, v%d' % (P+(k+4) % 6, S+2*k, S+2*k+1))
        A('s_waitcnt vmcnt(0)')
        for t in range(8): A('v_mfma_f32_16x16x32_bf16 %s, %s, %s, 0' % (v(O+4*t, 4), v(VX+4*t, 4), v(P, 4)))
        for t in range(8): A('v_mfma_f32_16x16x16_bf16 %s, %s, %s, %s' % (v(O+4*t, 4), v(VM+2*t, 2), v(P+4, 2), v(O+4*t, 4)))
        A('s_lshl_b32 s49, %s, 18\n s_add_u32 s49, s49, %s' % (sSEG, sOUT))
        for u in range(4):
            for k in range(4): A('v_cvt_pk_bf16_f32 v%d, v%d, v%d' % (KM+4*u+k, O+8*u+2*k, O+8*u+2*k+1))
            A('buffer_store_dwordx4 %s, v%d, %s, s49 offen offset:%d sc1' % (v(KM+4*u, 4), vL, WS, u*1024))
    ws_loop(A, 'QA', setup, [body], 7, True, lambda: next_pair(A, 'QA'))

def role_BO(A):
    NS = 48; RB = 64; AC = 16
    A('ROLE_BO:\n s_mul_i32 %s, %s, 13\n s_lshr_b32 %s, %s, 8\n s_mul_i32 s3, %s, 20\n s_sub_u32 s19, %s, s3' % (sSEG0, sIDX, sSEG0, sSEG0, sSEG0, sIDX))
    A('v_lshlrev_b32 v%d, 4, v0' % vL)
    A('v_lshrrev_b32 v16, 4, v0\n v_lshlrev_b32 v16, 9, v16\n v_bfe_u32 v17, v0, 2, 2\n v_lshl_add_u32 v16, v17, 6, v16\n v_and_b32 v17, 3, v0\n v_lshl_add_u32 v16, v17, 4, v16')
    A('s_mul_i32 s48, %s, 40960\n v_add_u32 v%d, s48, v16' % (sW, vTR))
    A('v_lshrrev_b32 v16, 2, v0\n v_mul_u32_u24 v16, 1280, v16\n v_lshl_add_u32 v14, v17, 4, v16')
    ldptr(A, 28, K_BWO, 4096*1280)
    A('s_mul_i32 s60, %s, %d\n s_lshl_b32 s3, s19, 6\n s_add_u32 s60, s60, s3' % (sW, 1024*1280))
    rounds = [(WSRD, [('s60', (r*256+j*16)*1280) for j in range(16)], [(256 + ((r*8+i)*2+t)*4 + 2*p, (i*32+4*p)*64 + t*8) for i in range(8) for t in range(2) for p in range(2)], None) for r in range(4)]
    wload(A, rounds, 14, vTR, 16384, 's48', 3)
    ldptr(A, 24, K_OUT, 2048*1280)
    A('v_and_b32 v16, 15, v0\n v_mul_u32_u24 v16, 1280, v16\n v_lshrrev_b32 v17, 4, v0\n v_lshl_add_u32 v%d, v17, 4, v16' % vST)
    A('s_lshl_b32 s3, %s, 12\n v_add_u32 v%d, s3, v%d\n s_lshl_b32 s3, %s, 11\n v_add_u32 v%d, s3, v%d\n s_mov_b32 %s, 16384\n s_barrier' % (sW, vSW, vL, sW, vSR, vL, sDEL))
    A('BO_PAIR:'); set_pb(A)
    A('s_lshl_b32 s3, %s, 13\n s_add_u32 %s, s3, %d\n s_add_u32 %s, s3, %d\n s_mov_b32 %s, %s' % (sPAIR, sFIN, F_E6, sFOUT, F_E7, sSEG, sSEG0))
    A('s_lshl_b32 s3, %s, 15\n s_add_u32 %s, s3, %s\n s_add_u32 %s, %s, 0x%x' % (sW, sSRC, sPB, sSRC, sSRC, O_OB))
    A('s_and_b32 s59, %s, 1\n s_mul_i32 s59, s59, 20480\n s_lshl_b32 s3, s19, 10\n s_add_u32 s3, s3, s59\n s_add_u32 %s, s3, %s\n s_lshl_b32 s3, s19, 6\n s_add_u32 %s, s3, s59' % (sW, sRES, sPB, sOUT))
    A('BO_SEG:\n s_lshl_b32 s49, %s, 7\n s_add_u32 s49, s49, %s' % (sSEG, sFIN))
    poll(A, 's49', '16', vP, 58)
    A('s_mul_i32 s62, %s, 40960\n s_add_u32 s63, s62, %s\n s_add_u32 s3, s63, 0x%x' % (sSEG, sRES, O_X1))
    A('buffer_load_dwordx4 v[32:35], v%d, %s, s3 offen sc1' % (vL, WS))
    A('s_lshl_b32 s60, %s, 18\n s_add_u32 s60, s60, %s\n s_add_u32 s61, s60, 0x20000' % (sSEG, sSRC))
    def ld(n):
        ks, mt = n >> 1, n & 1
        if ks and ks % 4 == 0: A('s_add_u32 s%d, s%d, 4096' % (60+mt, 60+mt))
        A('buffer_load_dwordx4 %s, v%d, %s, s%d offen offset:%d sc1' % (v(RB+(n % NS)*4, 4), vL, WS, 60+mt, (ks % 4)*1024), tag=n)
    for n in range(NS): ld(n)
    for n in range(64):
        ks, mt = n >> 1, n & 1
        A.wait(vm=n)
        for t in range(2):
            d = AC + (mt*2+t)*4
            A('v_mfma_f32_16x16x32_bf16 %s, %s, %s, %s' % (v(d, 4), a((ks*2+t)*4, 4), v(RB+(n % NS)*4, 4), v(d, 4) if ks else '0'))
        if n + NS < 64: ld(n+NS)
    for k in range(4): A('ds_write_b128 v%d, %s offset:%d' % (vSW, v(AC+4*k, 4), k*1024))
    A('s_waitcnt lgkmcnt(0)\n s_barrier\n s_cmp_ge_u32 %s, 2\n s_cbranch_scc1 BO_NEXT' % sW)
    for w in range(4):
        for t in range(2): A('ds_read_b128 %s, v%d offset:%d' % (v(RB+(w*2+t)*4, 4), vSR, w*4096 + t*1024))
    A('s_waitcnt lgkmcnt(0)')
    for w in range(1, 4):
        for k in range(8): A('v_add_f32 v%d, v%d, v%d' % (RB+k, RB+k, RB+w*8+k))
    resid(A, 36, 32, RB)
    A('s_cmp_lg_u32 %s, 0\n s_cbranch_scc1 BO_FIN\n s_add_u32 s3, s63, 0x%x' % (sPAIR, O_X2))
    A('buffer_store_dwordx4 v[36:39], v%d, %s, s3 offen sc1' % (vL, WS))
    A('s_lshl_b32 s49, %s, 7\n s_add_u32 s49, s49, %s\n s_mov_b64 exec, 1\n v_mov_b32 v%d, 0\n v_mov_b32 v%d, 1\n s_waitcnt vmcnt(0)' % (sSEG, sFOUT, vP, vP+1))
    A('buffer_atomic_add v%d, v%d, %s, s49 offen sc1' % (vP+1, vP, WS)); stamp(A, 's49', vP+1, vP); A('s_mov_b64 exec, -1\n s_branch BO_NEXT')
    A('BO_FIN:\n s_add_u32 s3, s62, %s\n buffer_store_dwordx4 v[36:39], v%d, %s, s3 offen' % (sOUT, vST, SRC))
    A('BO_NEXT:\n v_add_u32 v%d, %s, v%d\n v_add_u32 v%d, %s, v%d\n s_sub_u32 %s, 0, %s' % (vSW, sDEL, vSW, vSR, sDEL, vSR, sDEL, sDEL))
    A('s_add_u32 %s, %s, %d\n s_cmp_lt_u32 %s, 64\n s_cbranch_scc1 BO_SEG' % (sSEG, sSEG, N_BO//20, sSEG))
    next_pair(A, 'BO')
```

```python
from g import *
F_E1 = 0x0
F_E2 = 0x1000; F_E3 = 0x5000; F_E6 = 0x9000; F_E7 = 0xD000
F_KV = 0x11000; F_KM = 0x15000
F_TEAM = 0x19000
FLAG_BYTES = 0x20000
RING_P = 0x100000; RING_M = 0x1C0000; RW = 0x200000
PB0 = 0x1000000; PBS = 0x6000000
O_Q = 0; O_KP = 0x300000; O_VT = 0x320000; O_OA = 0x400000; O_X1 = 0x700000; O_X2 = 0xA00000
O_KV = 0x1000000; O_KM = 0x3000000; O_OB = 0x4000000
WSB = 0x10000000
K_AX, K_WQ, K_WK, K_WV, K_WO, K_BX, K_MEM0, K_BWQ, K_BWK, K_BWV, K_BWO, K_SEG, K_OUT, K_DBG, K_WS = [8*i for i in range(15)]
N_KV, N_QA, N_BO, N_AO, N_P1 = 64, 48, 40, 6, 6
N_AT = 224 - N_KV - N_QA - N_BO - N_AO - N_P1
M_P1, M_AT, M_AO, M_KV, M_R, M_QA, M_BO = 1, 2, 4, 8, 16, 32, 64
WS = 's[8:11]'; sIDX = 's12'; sW = 's13'; sPAIR = 's14'; sPEND = 's15'; sMASK = 's16'; sPB = 's17'; sXCC = 's18'
SPIN = 0x80000
import os
TL = int(os.environ.get('TL', '0'))
def stamp(A, sflag, vt, vz):
    if TL: A('s_memrealtime s[100:101]\n s_waitcnt lgkmcnt(0)\n v_mov_b32 v%d, s100\n s_add_u32 s101, %s, 0x80000\n buffer_store_dword v%d, v%d, %s, s101 offen' % (vt, sflag, vt, vz, WS))

def poll(A, sflag, target, vt, st, sleep=1):
    l = A.lab('POLL'); d = A.lab('POLLD')
    A('v_mov_b32 v%d, 0' % vt)
    A('%s:\n buffer_load_dword v%d, v%d, %s, %s offen sc1\n s_waitcnt vmcnt(0)\n v_readfirstlane_b32 s%d, v%d' % (l, vt+1, vt, WS, sflag, st, vt+1))
    A('s_cmp_ge_u32 s%d, %s\n s_cbranch_scc1 %s' % (st, target, d))
    A('s_add_u32 s99, s99, 1\n s_cmp_ge_u32 s99, 0x%x\n s_cbranch_scc1 %s' % (SPIN, d))
    if sleep: A('s_sleep %d' % sleep)
    A('s_branch %s\n%s:' % (l, d))

def signal(A, sflag, vt, atomic=True):
    l = A.lab('SIG')
    A('s_cmp_lg_u32 %s, 0\n s_cbranch_scc1 %s' % (sW, l))
    A('v_mov_b32 v%d, 0\n v_mov_b32 v%d, 1\n s_mov_b64 exec, 1' % (vt, vt+1))
    if atomic: A('buffer_atomic_add v%d, v%d, %s, %s offen sc1' % (vt+1, vt, WS, sflag))
    else: A('buffer_store_dword v%d, v%d, %s, %s offen sc1' % (vt+1, vt, WS, sflag))
    stamp(A, sflag, vt+1, vt)
    A('s_mov_b64 exec, -1\n%s:' % l)

def wload(A, rounds, vdma, vtr, half_bytes, sbase, st):
    def dma(i):
        s, so, _, _ = rounds[i]
        for j, (b, c) in enumerate(so):
            A('s_add_u32 m0, %s, %d\n s_add_u32 s%d, %s, 0x%x' % (sbase, (i & 1)*half_bytes + j*1024, st, b, c))
            A('buffer_load_dwordx4 v%d, %s, s%d offen lds' % (vdma[s] if isinstance(vdma, dict) else vdma, s, st), tag=('dma', i))
    dma(0)
    if len(rounds) > 1: dma(1)
    for i, (s, so, rd, post) in enumerate(rounds):
        A.wait(vm=('dma', i))
        for item in rd:
            if callable(item): item(); continue
            d, imm = item[:2]; va = item[2] if len(item) > 2 else vtr
            A('ds_read_b64_tr_b16 %s, v%d offset:%d' % (R(d, 2), va, (i & 1)*half_bytes + imm))
        A('s_waitcnt lgkmcnt(0)')
        if post: post()
        if i + 2 < len(rounds): dma(i+2)

def entry(A, name, mask, p0, p1):
    A.begin(name)
    A('s_mov_b32 %s, %d\n s_mov_b32 %s, %d\n s_mov_b32 %s, %d\n s_branch MAIN' % (sMASK, mask, sPAIR, p0, sPEND, p1))
    A.desc(name, 256, 256)

def init_kernel(A):
    A.begin('init_kernel')
    A('s_load_dwordx2 s[4:5], s[0:1], %d\n s_waitcnt lgkmcnt(0)' % K_WS)
    srd(A, 8, 4, FLAG_BYTES)
    A('s_lshl_b32 s3, s2, 12\n v_lshlrev_b32 v1, 4, v0\n v_add_u32 v1, s3, v1')
    for i in range(4): A('v_mov_b32 v%d, 0' % (4+i))
    A('buffer_store_dwordx4 v[4:7], v1, s[8:11], 0 offen\n s_endpgm')
    A.desc('init_kernel', 8, 0, 16)

def main_head(A):
    A('MAIN:\n s_mov_b32 s99, 0\n s_cmp_ge_u32 s2, 256\n s_cbranch_scc1 EXIT')
    A('s_load_dwordx2 s[4:5], s[0:1], %d\n s_load_dwordx2 s[6:7], s[0:1], %d' % (K_WS, K_DBG))
    A('s_getreg_b32 %s, hwreg(HW_REG_XCC_ID)\n s_and_b32 %s, %s, 7' % (sXCC, sXCC, sXCC))
    A('v_lshrrev_b32 v1, 6, v0\n v_and_b32 v0, 63, v0\n v_readfirstlane_b32 %s, v1\n s_waitcnt lgkmcnt(0)' % sW)
    srd(A, 8, 4, WSB); srd(A, 20, 6, 256)
    if TL: A('s_mov_b64 exec, 1\n v_mov_b32 v2, 0\n s_lshl_b32 s3, s2, 2\n s_add_u32 s3, s3, 0x1a000'); stamp(A, 's3', 3, 2); A('s_mov_b64 exec, -1')
    A('s_cmp_lg_u32 %s, 0\n s_cbranch_scc1 TK_DONE' % sW)
    A('s_lshl_b32 s3, %s, 4\n v_mov_b32 v2, s3\n v_mov_b32 v3, 1\n s_mov_b64 exec, 1' % sXCC)
    A('buffer_atomic_add v3, v2, s[20:23], 0 offen sc0 sc1\n s_waitcnt vmcnt(0)\n s_mov_b64 exec, -1\n v_readfirstlane_b32 s3, v3')
    A('s_lshl_b32 s24, %s, 5\n s_add_u32 s24, s24, s3\n s_cmp_lt_u32 s3, 32\n s_cbranch_scc1 TK_HAVE' % sXCC)
    A('v_mov_b32 v2, 128\n v_mov_b32 v3, 1\n s_mov_b64 exec, 1\n buffer_atomic_add v3, v2, s[20:23], 0 offen sc0 sc1\n s_waitcnt vmcnt(0)\n s_mov_b64 exec, -1\n v_readfirstlane_b32 s25, v3')
    A('v_and_b32 v2, 7, v0\n v_lshlrev_b32 v2, 4, v2\n s_mov_b32 s27, 0')
    A('TK_W:\n buffer_load_dword v3, v2, s[20:23], 0 offen sc1\n s_waitcnt vmcnt(0)\n s_mov_b32 s26, 0')
    for i in range(8): A('v_readlane_b32 s%d, v3, %d\n s_add_u32 s26, s26, s%d' % (30+i, i, 30+i))
    A('s_add_u32 s27, s27, 1\n s_cmp_ge_u32 s27, 0x%x\n s_cbranch_scc1 TK_S\n s_cmp_lt_u32 s26, 256\n s_cbranch_scc1 TK_W\nTK_S:' % SPIN)
    A('s_mov_b32 s24, 0')
    for i in range(8):
        n = A.lab('TKN')
        A('s_min_u32 s26, s%d, 32\n s_sub_u32 s27, 32, s26\n s_cmp_ge_u32 s25, s27\n s_cbranch_scc1 %s' % (30+i, n))
        A('s_add_u32 s24, s26, s25\n s_add_u32 s24, s24, %d\n s_branch TK_HAVE\n%s:\n s_sub_u32 s25, s25, s27' % (32*i, n))
    A('TK_HAVE:\n v_mov_b32 v2, 0\n v_mov_b32 v3, s24\n ds_write_b32 v2, v3\n s_waitcnt lgkmcnt(0)')
    A('TK_DONE:\n s_barrier\n v_mov_b32 v2, 0\n ds_read_b32 v3, v2\n s_waitcnt lgkmcnt(0)\n v_readfirstlane_b32 %s, v3\n s_barrier' % sIDX)
    b = 0
    for nm, n, m in (('R', 32, M_R), ('KV', N_KV, M_KV), ('QA', N_QA, M_QA | M_P1), ('BO', N_BO, M_BO), ('AO', N_AO, M_AO), ('P1', N_P1, M_P1), ('AT', N_AT, M_AT | M_P1)):
        nx = A.lab('RD')
        A('s_cmp_ge_u32 %s, %d\n s_cbranch_scc1 %s\n s_and_b32 s3, %s, %d\n s_cbranch_scc0 EXIT\n s_branch ROLE_%s\n%s:\n s_sub_u32 %s, %s, %d' % (sIDX, n, nx, sMASK, m, nm, nx, sIDX, sIDX, n))
    A('EXIT:\n s_endpgm')

def set_pb(A):
    A('s_mul_i32 %s, %s, 0x%x\n s_add_u32 %s, %s, 0x%x' % (sPB, sPAIR, PBS, sPB, sPB, PB0))
```

```python
from k_roles1 import *
from k_b import xmax
import os
X_ = os.environ.get('RX', '')
DBG = int(os.environ.get('RDBG', '0'))
rT, rL, rIDX, rPS, rRL, rMS, rW2, rSW, rSR, rSR2, rLW, rFL, SEL = 0, 1, 2, 3, 4, 5, 6, 7, 8, 9, 10, 11, 12
AQ, AV, AF, PL, RSEL = 16, 32, 40, 52, 100
def P(i): return PL + 8*i
SCB, WL = 10240, 16384
SENT = 0xff81ff81
PST = int(os.environ.get('PST', '4224')); PSL = 80*PST
sH, sS, sP, sM, sMO, sKVB, sKMB, sFB, sRW, sRID = ['s%d' % i for i in range(32, 42)]
QK = (('q', 0), ('k', 0), ('q', 1), ('k', 1))
Z3 = int(os.environ.get('Z3', '4')); OWN = (0, 4, 8); OTH = (1, 2, 3, 5, 6, 7, 9, 9, 1, 2, 3, 5, 6, 7)
ORD = [(m, t, k) for k in range(10) for (m, t) in QK + ((('v', 0), ('v', 1)) if k in OWN else ())] + \
      [('v', t, k) for k in OTH[7:] for t in range(2)] + [('o', 2*u+t, k) for u in range(5) for k in range(2) for t in range(2)]
ZP = {0: 2, 1: 3, 2: 1, Z3: 4, Z3+1+(Z3 > 4): 5, }; ZP.update(zip(eval(os.environ.get('ZR', '(26,30,48,49,60,61)')), (2, 3, 2, 3, 2, 3)))
LP = eval(os.environ.get('LP', '[11,15,19,23,27,31,35,39,41,44]+[62,63,66,67,70,71,74,75]')); L2 = sum(1 for x in LP if x < 60)
NZ = len(ZP); ZL = sorted(ZP)
LOC = {}; nreg = 0
for n, f in enumerate(ORD):
    if n in ZP: LOC[f] = ('Z', ZL.index(n))
    elif n in LP: LOC[f] = ('L', LP.index(n))
    else: LOC[f] = ('R', 104 + 8*nreg); nreg += 1
assert nreg == 51 and len(LP) == 18
RWZ = RW + 128*18*2048

def role_R(A):
    A('ROLE_R:\n s_mov_b32 %s, %s\n s_lshl_b32 %s, %s, 5\n s_add_u32 %s, %s, %s' % (sH, sIDX, sRID, sW, sRID, sRID, sH))
    A('v_lshlrev_b32 v%d, 4, v0\n v_and_b32 v16, 15, v0\n v_lshrrev_b32 v17, 4, v0\n v_and_b32 v18, 7, v0\n v_bfe_u32 v19, v0, 3, 1\n v_and_b32 v20, 3, v0\n v_bfe_u32 v21, v0, 2, 2' % rL)
    A('v_and_b32 v27, 1, v0\n v_mul_u32_u24 v%d, 0xaaaa, v27\n v_add_u32 v%d, 0x4444, v%d\n v_lshrrev_b32 v23, 1, v17\n v_and_b32 v24, 1, v17' % (rIDX, rIDX, rIDX))
    A('v_mul_u32_u24 v22, %d, v17\n v_lshl_add_u32 v22, v16, 3, v22' % PST)
    A('s_mul_i32 s3, %s, %d\n s_lshl_b32 s59, %s, 7\n s_add_u32 s3, s3, s59\n v_add_u32 v%d, s3, v22' % (sW, 4*PST, sH, rPS))
    A('s_mul_i32 s3, %s, %d\n v_add_u32 v%d, s3, v%d' % (sRID, PST, rRL, rL))
    A('v_bfe_u32 v22, v0, 2, 1\n v_lshlrev_b32 v22, 8, v22\n v_lshl_add_u32 v22, v24, 5, v22\n v_bfe_u32 v25, v0, 1, 1\n v_lshl_add_u32 v22, v25, 4, v22\n v_lshl_add_u32 v22, v23, 3, v22\n v_lshl_add_u32 v22, v27, 2, v22')
    A('s_lshr_b32 s3, %s, 2\n s_lshl_b32 s3, s3, 9\n s_and_b32 s59, %s, 3\n s_lshl_b32 s59, s59, 6\n s_add_u32 s3, s3, s59\n v_add_u32 v%d, s3, v22' % (sRID, sRID, rMS))
    A('s_lshl_b32 s3, %s, 10\n v_add_u32 v%d, s3, v%d\n s_and_b32 s55, %s, 1\n s_lshl_b32 s55, s55, 10\n s_add_u32 s55, s55, 8192\n s_xor_b32 s56, s55, 1024' % (sW, rW2, rL, sW))
    A('v_lshlrev_b32 v22, 8, v23\n v_lshl_add_u32 v22, v18, 5, v22\n v_lshl_add_u32 v22, v24, 4, v22\n s_lshl_b32 s3, %s, 9\n v_add_u32 v%d, s3, v22\n v_lshl_add_u32 v%d, v19, 11, v22' % (sW, rSW, rSR))
    A('v_lshlrev_b32 v22, 5, v18\n v_lshl_add_u32 v22, v23, 4, v22\n v_lshl_add_u32 v22, v24, 3, v22\n v_lshl_add_u32 v%d, v19, 2, v22' % rSR2)
    A('s_mul_i32 s48, %s, 36864\n s_add_u32 s48, s48, %d\n v_add_u32 v%d, s48, v%d' % (sW, WL, rLW, rL))
    A('v_lshlrev_b32 v22, 1, v17\n v_sub_u32 v22, v16, v22\n v_mov_b32 v25, 0x3f803f80')
    for k in range(4): A('v_cmp_eq_u32 vcc, %d, v22\n v_cndmask_b32 v%d, 0, v25, vcc' % ((0, 1, 8, 9)[k], SEL+k))
    A('v_mov_b32 v25, 0x3f80\n v_mov_b32 v26, 0x3f800000\n v_lshl_add_u32 v22, v20, 2, v21')
    for k in range(4):
        A('v_cmp_eq_u32 vcc, %d, v22\n v_cndmask_b32 v%d, 0, v25, vcc\n v_cmp_eq_u32 vcc, %d, v22\n v_cndmask_b32 v%d, v%d, v26, vcc' % (2*k, RSEL+k, 2*k+1, RSEL+k, RSEL+k))
    A('s_mov_b32 s50, 0x00ff00ff\n s_mov_b32 s51, 0x00ff00ff\n s_mov_b32 s57, 0x%x' % SENT)
    A('s_cmp_ge_u32 %s, 80\n s_cbranch_scc1 R_NI' % sRID)
    for i in range(4): A('v_mov_b32 v%d, s57' % (28+i))
    for i in range(4): A('s_mov_b32 s3, 0x%x\n buffer_store_dwordx4 v[28:31], v%d, %s, s3 offen sc1' % (RING_P + (i >> 2)*PSL + (i & 3)*1024, rRL, WS))
    for i in range(3): A('s_mov_b32 s3, 0x%x\n buffer_store_dword v28, v%d, %s, s3 offen sc1' % (RING_M + i*10240, rMS, WS))
    A('R_NI:\n s_waitcnt vmcnt(0)\n s_barrier\n s_cmp_lg_u32 %s, 0\n s_cbranch_scc1 R_NT' % sW)
    A('s_cmp_eq_u32 %s, 0\n s_cselect_b32 s3, 1, 0x10001\n v_mov_b32 v28, 144\n v_mov_b32 v29, s3\n s_mov_b64 exec, 1\n buffer_atomic_add v29, v28, s[20:23], 0 offen sc1\n s_mov_b64 exec, -1\nR_NT:' % sXCC)
    A('s_load_dwordx4 s[4:7], s[0:1], %d\n s_load_dwordx4 s[60:63], s[0:1], %d\n s_waitcnt lgkmcnt(0)' % (K_BWQ-8, K_BWK))
    srd(A, 64, 6, 640*8192); srd(A, 68, 60, 640*8192); srd(A, 72, 62, 640*8192); srd(A, 24, 4, 10240)
    ldptr(A, 76, K_BWO, 4096*1280)
    A('v_lshrrev_b32 v22, 2, v0\n v_lshlrev_b32 v96, 13, v22\n v_lshl_add_u32 v96, v20, 4, v96\n v_mul_u32_u24 v97, 1280, v22\n v_lshl_add_u32 v97, v20, 4, v97')
    A('v_lshlrev_b32 v22, 4, v23\n v_lshl_add_u32 v22, v24, 2, v22\n v_and_b32 v25, 1, v21\n v_add_u32 v22, v22, v25\n v_lshrrev_b32 v25, 1, v21\n v_lshl_add_u32 v22, v25, 3, v22')
    A('v_lshlrev_b32 v22, 6, v22\n v_lshl_add_u32 v22, v20, 4, v22\n s_mul_i32 s49, %s, 40960\n v_add_u32 v98, s49, v22' % sW)
    A('s_lshl_b32 s60, %s, 8\n s_lshl_b32 s3, %s, 6\n s_add_u32 s60, s60, s3\n s_mul_i32 s61, %s, %d\n s_add_u32 s61, s61, s3' % (sH, sW, sH, 128*1280))
    for p in range(10):
        if p >= 8: A('s_lshl_b32 s3, s%d, 9' % (55, 56)[p-8])
        else: A('s_xor_b32 s3, %s, %d\n s_lshl_b32 s3, s3, 19' % (sW, p))
        A('s_add_u32 s%d, s3, s60' % (80+p))
    A('s_lshl_b32 s3, %s, 2\n s_add_u32 s3, s3, %s\n s_mul_i32 %s, s3, %d\n s_add_u32 %s, %s, 0x%x\n s_mul_i32 s62, s3, %d\n s_add_u32 s62, s62, 0x%x' % (sH, sW, sRW, 18*2048, sRW, sRW, RW, NZ*2048, RWZ))
    rounds = []
    def mk(srdn, so, frs):
        rd = []; spill = []
        for f, rowb in frs:
            if LOC[f][0] == 'R': d = LOC[f][1]
            else: d = 16 + 8*len(spill); spill.append((f, d))
            rd += [(d + hs*4 + 2*p, (rowb + hs*32 + 2*p)*64 + (f[1] & 1)*8) for hs in range(2) for p in range(2)]
        assert len(spill) <= 10
        def post():
            for f, d in spill:
                A('s_add_u32 s3, %s, %d' % (sRW if LOC[f][0] == 'L' else 's62', LOC[f][1]*2048))
                for hs in range(2): A('buffer_store_dwordx4 %s, v%d, %s, s3 offen offset:%d' % (v(d+4*hs, 4), rL, WS, hs*1024))
        rounds.append((srdn, so, rd, post))
    for m, sn in (('q', 's[64:67]'), ('k', 's[68:71]'), ('v', 's[72:75]')):
        for hf in range(2): mk(sn, [('s%d' % (80+hf*5+i), j*16*8192) for i in range(5) for j in range(4)], [((m, t, hf*5+i), i*64) for i in range(5) for t in range(2)])
    for us in ((0, 1), (2, 3), (4,)):
        mk('s[76:79]', [('s61', j*16*1280 + u*256) for u in us for j in range(8)], [(('o', 2*u+t, k), (u-us[0])*128 + k*64) for u in us for k in range(2) for t in range(2)])
    wload(A, rounds, {'s[64:67]': 96, 's[68:71]': 96, 's[72:75]': 96, 's[76:79]': 97}, 98, 20480, 's49', 3)
    A('s_waitcnt vmcnt(0)\n s_barrier')
    for j in range(36): A('s_add_u32 m0, s48, %d\n s_add_u32 s3, %s, %d\n buffer_load_dwordx4 v%d, %s, s3 offen lds' % (j*1024, sRW, j*1024, rL, WS))
    for i in range(6): A('s_add_u32 s%d, s62, %d' % (64+i, 0 if 'ZHOT' in X_ else i*4096))
    A('v_mov_b32 v28, 144\nR_TW:\n buffer_load_dword v29, v28, s[20:23], 0 offen sc1\n s_waitcnt vmcnt(0)\n v_readfirstlane_b32 s59, v29\n s_and_b32 s3, s59, 0xffff')
    A('s_add_u32 s99, s99, 1\n s_cmp_ge_u32 s99, 0x%x\n s_cbranch_scc1 R_TD\n s_cmp_lt_u32 s3, 32\n s_cbranch_scc1 R_TW\nR_TD:' % SPIN)
    A('s_mov_b32 %s, 0x%x\n s_mov_b32 %s, 0x%x\n s_mov_b32 %s, 0x%x\n s_mov_b32 s70, 0x%x' % (sP, RING_P, sM, RING_M, sMO, RING_M+20480, f2u(SC_B)))
    A('s_mov_b32 s60, 0x%x\n s_mov_b32 s61, 0x%x\n s_mov_b32 s63, 0xff810000' % (f2u(2.0**-80), f2u(2.0**80)))
    A('s_mov_b32 s28, 0\n' + '\n'.join('s_mov_b32 s%d, 0x%x' % (72+u, RING_P + u*16*PST) for u in range(1, 5)))
    A('s_cmp_eq_u32 s59, %d\n s_cbranch_scc0 RS_PAIR' % (33 if 'SLOW' in X_ else 32))
    body(A, 'RF', ''); body(A, 'RS', ' sc1')
from k_rb import body
```

```python
from k_r import *
DLA = int(os.environ.get('DLA', '1')); DLB = int(os.environ.get('DLB', '8')); L1N = int(os.environ.get('L1N', '0')); KVF = os.environ.get('KVF', 'nt'); PFF = os.environ.get('PFF', 'sc1')
EP = int(os.environ.get('EP', '0')); PFV = int(os.environ.get('PFV', '0')); VXN = int(os.environ.get('VXN', '37'))
ZL_ = int(os.environ.get('ZL', '0')); LATE = [3, 4] if ZL[3] == 4 else []
DL1 = int(os.environ.get('DL1', '0')); DLZ = int(os.environ.get('DLZ', '2')); STB = int(os.environ.get('STB', '1'))
B2N = int(os.environ.get('B2N', '1')); B3N = int(os.environ.get('B3N', '15')); BQ = int(os.environ.get('BQ', '2'))
KMF = os.environ.get('KMF', 'sc1')
WARM = int(os.environ.get('WARM', '0'))
DL0 = int(os.environ.get('DL0', '0')); DLC = int(os.environ.get('DLC', '0'))
DLY = int(os.environ.get('DLY', '2'))
def body(A, nm, sc):
    st = {'k': 0}
    AC_ = [42, 43, 44, 45, 46, 47, 52, 53]
    def ts(i):
        if DBG == 2: i = {0: 0, 'b1': 1, 'b2': 2, 1: 3, 4: 4, 5: 5, 'c0': 6, 7: 7, 8: 8}.get(i)
        if not isinstance(i, int) or (st.get('nots') and i in (6, 7)): return
        if DBG: A('s_mem%stime s[%d:%d]' % ('real' if DBG == 2 else '', 78+2*i, 79+2*i))
    def zl(i, hs):
        if 'NOZ' in X_ and st.get('loop'): return
        A('buffer_load_dwordx4 %s, v%d, %s, s%d offen offset:%d%s' % (v(P(ZP[ZL[i]])+4*hs, 4), rL, WS, 64+i//2, (i & 1)*2048 + hs*1024, '' if i < L1N else ' sc1'), tag=('Z', i))
    def zload(i): zl(i, 0); zl(i, 1)
    def lload(i):
        if 'NOL' in X_ and 1 < i < L2: return
        for hs in range(2): A('ds_read_b128 %s, v%d offset:%d' % (v(P(4+i % 2)+4*hs, 4), rLW, i*2048 + hs*1024), tag=('L', i))
    SL = (AF, AF+4, AF+8, RSEL)
    def ASL(i): return SL[(1, 3, 0, 3, 0, 2, 3, 3, 0, 2, 1, 3, 0, 2)[i]]
    def aload(i):
        p = OTH[i]
        if p == 9: A('v_add_u32 v%d, s56, v%d' % (rT, rL))
        else: A('v_xor_b32 v%d, %d, v%d' % (rT, (p & 3)*1024, rW2))
        A('ds_read_b128 %s, v%d offset:%d' % (v(ASL(i), 4), rT, 4096 if 4 < p < 9 else 0), tag=('A', i))
    BD = (AF, AF+8, AF+4, RSEL)
    def bl(j): A('buffer_load_dwordx4 %s, v%d, %s, %s offen sc1' % (v(BD[j], 4), rL if j >= 2 else rW2, WS, (sM, 's7', 's59', 's62')[j]), tag=('B', j))
    def bchk(j):
        A.wait(vm=('B', j)); b = BD[j]
        A('%s_BC%d:\n v_max3_u32 v%d, v%d, v%d, v%d\n v_max_u32 v%d, v%d, v%d' % (nm, j, rT, b, b+1, b+2, rT, rT, b+3))
        A('v_cmp_le_u32 vcc, s63, v%d\n s_cbranch_vccnz %s_BR%d ; nf\n%s_BOK%d:' % (rT, nm, j, nm, j))
    def mw(j): A('ds_write_b128 v%d, %s offset:%d' % (rW2, v(BD[j], 4), 4096*j), tag='mw')
    def pa(d=P(4)):
        for i in range(4): A('buffer_load_dwordx4 %s, v%d, %s, %s offen offset:%d sc1' % (v(d+4*i, 4), rRL, WS, sP, i*1024), tag=('pa', i))
    def qc(b, st_, br): A('v_max3_u32 v%d, v%d, v%d, v%d\n v_max_u32 v%d, v%d, v%d\n v_cmp_le_u32 vcc, s63, v%d\n %s ; nf' % (rT, b, b+st_, b+2*st_, rT, rT, b+3*st_, rT, br))
    def red(b):
        for i in range(4): A('v_mfma_f32_16x16x32_bf16 %s, %s, %s, %s' % (v(AF+8, 4), v(RSEL, 4), v(b+4*i, 4), v(AF+8, 4) if i else '0'))
    def by(): A('buffer_load_dwordx4 %s, v%d, %s, %s offen sc1' % (v(AF+4, 4), rW2, WS, sM))
    def epa():
        A('s_cmp_lg_u32 %s, 0\n s_cbranch_scc1 %s_NEP ; nf' % (sW, nm)); q = list(A.vq); pa(); A('%s_NEP:' % nm); A.vq = q
    def pfv(): A('v_lshlrev_b32 v%d, 3, v%d\n s_mov_b64 exec, 0xffff\n buffer_load_dword v%d, v%d, %s, s4 offen %s\n s_mov_b64 exec, -1' % (rT, rL, rFL, rT, WS, PFF))
    def kvl(d, off, tag, so='s72'): A('buffer_load_dwordx4 %s, v%d, %s, %s offen offset:%d %s' % (v(d, 4), rL, WS, so, off, KVF), tag=tag)
    def rst(u): A('buffer_store_dwordx2 %s, v%d, %s, %s offen%s' % (v(AQ+12, 2), rPS, WS, ('s28', 's29', 's30', 's77', 's54')[u], sc))
    sal = ['s_add_u32 s4, %s, 1\n s_min_u32 s4, s4, 63' % sS, 's_bitcmp1_b64 s[48:49], s4\n s_cbranch_scc0 %s_WKV ; nf\n%s_KVOK:' % (nm, nm), 's_lshl_b32 s4, %s, 19\n s_add_u32 s4, s4, %s' % ('0' if 'KVHOT' in X_ else 's4', sKVB),
           's_lshl_b32 s5, %s, 2\n s_add_u32 s5, s5, s31' % sS, 's_cmp_eq_u32 %s, 0\n s_cselect_b32 s5, 0x%x, s5' % (sS, WSB), 's_lshl_b32 s6, %s, 18\n s_add_u32 s6, s6, %s' % (sS, sKMB),
           's_add_u32 s7, %s, 4096\n s_add_u32 s59, %s, s55\n s_add_u32 s62, %s, s56\n s_mov_b32 s58, 0' % (sM, sM, sM)]
    after = {}
    def at(n, f): after.setdefault(n, []).append(f)
    SCH = dict(B2=1, z5a=5, z5b=8, z6a=11, z6b=14, B3=16, B4=27, z7a=28, z7b=30, z8a=32, z8b=34, vx0=37, vx1=40, z9a=48, z9b=48, z10a=49, z10b=49, kx0=50, kx1=51, fl=55, z0a=60, z0b=60, z1a=61, z1b=61)
    if not LATE: SCH.update(B2=0, z3a=1, z3b=2, z4a=4, z4b=6, z5a=8, z5b=11, z6a=13, B3=15, z6b=17)
    SCH.update(eval(os.environ.get('SCH', '{}')))
    ACT = dict(B2=lambda: bl(1), B3=lambda: bl(2), B4=lambda: bl(3), vx0=lambda: kvl(P(1), 2048, 'vx'), vx1=lambda: kvl(P(1)+4, 3072, 'vx'),
               kx0=lambda: kvl(P(0), 0, 'kx', 's4'), kx1=lambda: kvl(P(0)+4, 1024, 'kx', 's4'), fl=lambda: flags())
    for k_, n_ in SCH.items(): at(n_, ACT[k_] if k_ in ACT else (lambda i, h: (lambda: zl(i, h)))(int(k_[1:-1]), 'ab'.index(k_[-1])))
    for n_, f_ in ((ZL[3], lambda: lload(0)), (ZL[4], lambda: lload(1)), (EP or 99, epa), (32, lambda: aload(8)), (36, lambda: aload(9))): at(n_, f_)
    if PFV: at(PFV, pfv)
    for k_, n_ in enumerate((43, 45, 46, 12, 17, 21, 47)): at(n_, (lambda t: (lambda: A(t)))(sal[k_]))
    def sm(n, acc, af):
        f = ORD[n]; kind, i = LOC[f]
        if kind == 'Z': A.wait(vm=('Z', i)); b = v(P(ZP[n]), 8)
        elif kind == 'L': A.wait(lg=('L', i)); b = v(P(4+i % 2), 8)
        else: b = R(i, 8)
        A('v_smfmac_f32_16x16x64_bf16 %s, %s, %s, v%d' % (v(acc, 4), v(af, 4), b, rIDX))
        if kind == 'L' and i+2 < 18 and i+2 not in (L2, L2+1): lload(i+2)
        for f_ in after.get(n, ()): f_()
    def cvt(d, s_, s2=None): A('v_cvt_pk_bf16_f32 v%d, v%d, v%d' % (d, s_, s_+1 if s2 is None else s2))
    def zero(b, n):
        for i in range(0, n, 2): A('v_mov_b64 %s, 0' % v(b+i, 2))
    DPP = 'row_ror:8 row_mask:0xf bank_mask:0xf'
    def bg(n=1):
        for _ in range(n):
            k = st['k']
            A.wait(lg=('A', 7+k))
            for t in range(2): sm(46+2*k+t, AV+4*t, ASL(7+k))
            if k+3 < 7: aload(10+k)
            st['k'] += 1
    def flags(): A('v_lshrrev_b32 v%d, 2, v%d\n buffer_load_dword v%d, v%d, %s, s71 offen sc1' % (rT, rL, rFL, rT, WS))
    A('%s_PAIR:' % nm); set_pb(A)
    if TL: A('s_mov_b64 exec, 1\n s_lshl_b32 s3, %s, 2\n s_lshl_b32 s59, %s, 7\n s_add_u32 s3, s3, s59\n s_add_u32 s3, s3, 0x1b000' % (sH, sPAIR)); stamp(A, 's3', 16, rL); A('s_mov_b64 exec, -1')
    A('s_lshl_b32 s3, %s, 14\n s_add_u32 s54, s3, %s\n s_add_u32 s54, s54, 0x%x\n s_lshl_b32 s59, %s, 12\n s_add_u32 %s, s54, s59\n s_add_u32 s3, s3, s59' % (sH, sPB, O_KV, sW, sKVB))
    A('s_lshr_b32 s3, s3, 1\n s_add_u32 %s, s3, %s\n s_add_u32 %s, %s, 0x%x' % (sKMB, sPB, sKMB, sKMB, O_KM))
    A('s_lshl_b32 s3, %s, 13\n s_lshl_b32 s59, %s, 8\n s_add_u32 %s, s3, s59\n s_add_u32 s71, %s, %d\n s_add_u32 %s, %s, %d\n s_mov_b32 %s, 0' % (sPAIR, sH, sFB, sFB, F_KV, sFB, sFB, F_KM, sS))
    A('s_sub_u32 s31, %s, 4\n s_cmp_eq_u32 %s, 3\n s_cselect_b32 s31, s31, 0x%x' % (sFB, sW, WSB))
    A('v_bfe_u32 v16, v%d, 5, 3\n v_mul_u32_u24 v16, 1280, v16\n v_lshrrev_b32 v17, 8, v%d\n v_lshl_add_u32 v16, v17, 5, v16\n v_and_b32 v17, 16, v%d\n v_add_u32 v16, v16, v17' % (rL, rL, rL))
    A('s_lshl_b32 s3, %s, 7\n s_lshr_b32 s59, s55, 3' % sW)
    A('buffer_load_dwordx4 %s, v16, s[24:27], s3 offen\n buffer_load_dwordx4 %s, v16, s[24:27], s3 offen offset:512\n buffer_load_dwordx4 %s, v16, s[24:27], s59 offen' % (v(AF, 4), v(AF+4, 4), v(AF+8, 4)))
    for i in range(5): zload(i)
    poll(A, 's71', '1', 16, 3, 0); zero(AQ, 24); kvl(P(0), 0, 'kx', sKVB); kvl(P(0)+4, 1024, 'kx', sKVB)
    A('s_add_u32 s7, %s, 4096\n s_add_u32 s59, %s, s55\n s_add_u32 s62, %s, s56' % (sMO, sMO, sMO))
    A('buffer_store_dwordx4 %s, v%d, %s, s7 offen%s\n buffer_store_dwordx4 %s, v%d, %s, s59 offen%s' % (v(AF+4, 4), rW2, WS, sc, v(AF+8, 4), rL, WS, sc))
    A('v_mov_b32 v%d, 0\n s_waitcnt vmcnt(0) lgkmcnt(0)\n s_barrier' % rFL)
    if DBG: A('s_mov_b32 s100, 0\n s_mov_b32 s98, 0\n' + '\n'.join('s_mov_b32 s%d, 0' % x for x in AC_))
    A('%s_STEP:' % nm); st['loop'] = 1
    A.vq = []; A.lq = []
    mw(0)
    if DBG:
        ts(8); A('s_waitcnt lgkmcnt(0)\n s_cmp_lt_u32 %s, 4\n s_cbranch_scc1 %s_NA' % (sS, nm))
        for i in range(8): A('s_sub_u32 s3, s%d, s%d\n s_add_u32 s%d, s%d, s3' % (80+2*i, 78+2*i, AC_[i], AC_[i]))
        if DBG == 2:
            A('s_and_b32 s3, %s, 7\n s_cbranch_scc1 %s_NA\n s_lshl_b32 s3, %s, 10\n s_lshl_b32 s96, %s, 5\n s_add_u32 s3, s3, s96\n s_add_u32 s3, s3, 0x80000' % (sS, nm, sS, sRID))
            for i in range(8): A('v_mov_b32 v%d, s%d' % (AF+4+i, 78+2*i))
            A('s_mov_b64 exec, 1\n buffer_store_dwordx4 %s, v%d, %s, s3 offen\n buffer_store_dwordx4 %s, v%d, %s, s3 offen offset:16\n s_mov_b64 exec, -1\n s_waitcnt vmcnt(0)' % (v(AF+4, 4), rL, WS, v(AF+8, 4), rL, WS))
        A('%s_NA:' % nm); ts(0)
    st['k'] = 0
    n = 0; ia = 0
    for p in range(10):
        if p in OWN:
            j = OWN.index(p)
            if j: bchk(j); ts('b%d' % j)
            if j == 1: mw(j)
            for q in range(6):
                sm(n, AQ + q*4, BD[j]); n += 1
                if q == BQ and j < 2: A.wait(lg='mw'); A('s_barrier'); A.wait(vm='Y'); aload(ia); aload(ia+1)
                if n == 3: A('v_cmp_ne_u32 s[48:49], 0, v%d\n s_lshl_b32 s72, %s, 19\n s_add_u32 s72, s72, %s' % (rFL, '0' if 'KVHOT' in X_ else sS, sKVB))
            if j < 2: aload(ia+2)
        else:
            if p == 9: bchk(3)
            A.wait(lg=('A', ia))
            for q in range(4): sm(n, AQ + q*4, ASL(ia)); n += 1
            ia += 1
    ts(1); bg(1)
    for b in (AQ, AQ+8):
        for k in range(4): cvt(b+k, b+2*k)
        A('v_mfma_f32_16x16x32_bf16 %s, %s, %s, 0' % (v(b+4, 4), v(b, 4), v(SEL, 4)))
    bg(1)
    cvt(AQ, AQ+4); cvt(AQ+1, AQ+6); cvt(AQ+2, AQ+12); cvt(AQ+3, AQ+14)
    SD = (P(4), P(4)+4, AQ+8)
    for d, src in zip(SD, (P(0), P(0)+4, AQ)): A('v_mfma_f32_16x16x32_bf16 %s, %s, %s, 0' % (v(d, 4), v(src, 4), v(AQ, 4)))
    bg(1)
    A('s_mov_b64 exec, s[50:51]')
    for t in range(3): A('ds_write_b128 v%d, %s offset:%d' % (rSW, v(SD[t], 4), SCB + t*2048), tag='sw')
    A('s_mov_b64 exec, -1')
    bg(1)
    A.wait(lg='sw'); A('s_barrier'); ts(2)
    for w in range(4): A('ds_read_b128 %s, v%d offset:%d' % (v(P(4)+4*w, 4), rSR, SCB + w*512), tag=('sr', w))
    for w in range(4): A('ds_read_b32 v%d, v%d offset:%d' % (AQ+4+w, rSR2, SCB + 4096 + 256 + w*512), tag='sm')
    bg(1)
    if 'NOKM' not in X_: A('s_not_b64 exec, s[50:51]\n buffer_store_dwordx4 %s, v%d, %s, s6 offen %s\n s_mov_b64 exec, -1' % (v(AQ, 4), rL, WS, KMF))
    bg(2)
    S = P(4); E = AQ+12; PX = P(5); L_ = AQ+8
    A.wait(lg=('sr', 1))
    for j in range(4): A('v_add_f32 v%d, v%d, v%d' % (S+j, S+j, S+4+j))
    A.wait(lg=('sr', 3))
    for j in range(4): A('v_add_f32 v%d, v%d, v%d' % (S+8+j, S+8+j, S+12+j))
    A.wait(lg='sm')
    A('v_add_f32 v%d, v%d, v%d\n v_add_f32 v%d, v%d, v%d' % (AQ+4, AQ+4, AQ+5, AQ+6, AQ+6, AQ+7))
    for j in range(4): A('v_add_f32 v%d, v%d, v%d' % (S+j, S+j, S+8+j))
    A('v_add_f32 v%d, v%d, v%d\n v_mul_f32 v%d, s70, v%d' % (AQ+4, AQ+4, AQ+6, AQ+4, AQ+4))
    for k in range(4): cvt(AV+k, AV+2*k)
    if 'NOKM' not in X_: A('buffer_store_dwordx4 %s, v%d, %s, s6 offen offset:1024 %s' % (v(AV, 4), rL, WS, KMF))
    A.wait(vm='vx')
    A('%s_EXP:' % nm)
    for j in range(4): A('v_exp_f32 v%d, v%d' % (E+j, S+j))
    A('v_exp_f32 v%d, v%d' % (AQ+5, AQ+4))
    cvt(PX, E); cvt(PX+1, E+2); cvt(PX+4, AQ+5, AQ+5)
    A('v_add_f32 v%d, v%d, v%d' % (L_, E, E+1))
    A('v_mov_b32_dpp v%d, v%d %s\n v_mov_b32_dpp v%d, v%d %s\n v_mov_b32_dpp v%d, v%d %s' % (PX+2, PX, DPP, PX+3, PX+1, DPP, PX+5, PX+4, DPP))
    A('v_add_f32 v%d, v%d, v%d\n v_add_f32 v%d, v%d, v%d' % (L_+1, E+2, E+3, L_, L_, AQ+5))
    ts(3)
    for t in range(2): A('v_mfma_f32_16x16x32_bf16 %s, %s, %s, 0' % (v(AF+4*t, 4), v(P(1)+4*t, 4), v(PX, 4)))
    A('v_add_f32 v%d, v%d, v%d' % (L_, L_, L_+1))
    for t in range(2): A('v_mfma_f32_16x16x16_bf16 %s, %s, %s, %s' % (v(AF+4*t, 4), v(AV+2*t, 2), v(PX+4, 2), v(AF+4*t, 4)))
    A('v_add_f32_dpp v%d, v%d, v%d %s' % (L_, L_, L_, DPP))
    xmax(A, L_, L_+1, 'v_add_f32')
    A('v_med3_f32 v%d, v%d, s60, v%d' % (L_+1, L_, L_) if 0 else 'v_mov_b32 v%d, s61\n v_rcp_f32 v%d, v%d\n v_med3_f32 v%d, v%d, s60, v%d\n v_cmp_neq_f32 vcc, v%d, v%d' % (L_+1, L_+2, L_, L_+1, L_, L_+1, L_, L_+1))
    for j in range(0, 8, 2): A('v_pk_mul_f32 %s, %s, %s op_sel_hi:[1,0]' % (v(AF+j, 2), v(AF+j, 2), v(L_+2, 2)))
    A('s_cbranch_vccnz %s_FB ; nf\n%s_OK:' % (nm, nm)); zl(2, 0)
    for k in range(4): cvt(AF+8+k, AF+2*k)
    A('s_mov_b64 exec, s[50:51]'); A('ds_write_b128 v%d, %s offset:8192' % (rSW, v(AF+8, 4)), tag='ow'); A('s_mov_b64 exec, -1')
    lload(L2); lload(L2+1); zl(2, 1)
    A('s_mov_b64 exec, 1\n buffer_store_dword v%d, v%d, %s, s5 offen sc1' % (rIDX, rL, WS)); stamp(A, 's5', rT, rL); A('s_mov_b64 exec, -1')
    A('s_cmp_eq_u32 %s, 63\n s_cbranch_scc1 %s_LAST ; nf' % (sS, nm))
    A.wait(lg='ow'); A('s_barrier'); ts(4)
    for k in range(2): A('ds_read_b128 %s, v%d offset:%d' % (v(AF+4*k, 4), rL, 8192 + k*1024), tag=('O', k))
    zero(AQ, 24)
    def fin(u):
        b = AQ + (u % 3)*8; d = AF + 8 + (u & 1)*2
        o = ['v_add_f32 v%d, v%d, v%d' % (b+2*j, b+2*j, b+2*j+1) for j in range(4)]
        o += ['v_cvt_pk_bf16_f32 v%d, v%d, v%d' % (d+t, b+4*t, b+4*t+2) for t in range(2)]
        o.insert(5, 'v_and_or_b32 v%d, v%d, -2, s28' % (d, d)); o[5], o[6] = o[6], o[5]
        o += ['buffer_store_dwordx2 %s, v%d, %s, %s offen%s' % (v(d, 2), rPS, WS, (sP, 's73', 's74', 's75', 's76')[u], sc)]
        if u < 2: o += ['v_mov_b64 %s, 0' % v(b+j, 2) for j in range(0, 8, 2)]
        return o
    pend = []
    for u in range(5):
        for q in range(4):
            k, t = q >> 1, q & 1
            A.wait(lg=('O', k))
            sm(60+u*4+q, AQ+(u % 3)*8+4*t, AF+4*k)
            if q == 1 and u: pend += fin(u-1)
            for _ in range(3):
                if pend: A(pend.pop(0))
    for x in pend + fin(4): A(x)
    ts(5)
    if 'MEAS' in X_:
        A('s_waitcnt vmcnt(0)'); ts(6)
        if 'M1' in X_: A('buffer_load_dword v%d, v%d, %s, s71 offen sc1' % (rT, rIDX, WS))
        elif 'M2' in X_: bl(0)
        else: pa()
        A('s_waitcnt vmcnt(0)'); ts(7); st['nots'] = 1
    nst = sum(1 for x in A.L[A.L.index('%s_NEP:' % nm):] if 'buffer_' in x) if EP else 0
    if EP: A('s_cmp_eq_u32 %s, 0\n s_cbranch_scc1 %s_C0 ; nf' % (sW, nm))
    A('s_cmp_ge_u32 %s, 80\n s_cbranch_scc1 %s_NR ; nf' % (sRID, nm))
    def rsel():
        A('v_lshrrev_b32 v%d, 2, v%d\n v_and_b32 v%d, 16, v%d\n s_movk_i32 s3, 0x3f80\n v_lshlrev_b32_e64 v%d, v%d, s3' % (rT, rL, rT, rT, rT, rT))
        for k, m_ in enumerate((0x00110011, 0x11001100, 0x00220022, 0x22002200)): A('s_mov_b32 vcc_lo, 0x%x\n s_mov_b32 vcc_hi, 0x%x\n v_cndmask_b32 v%d, 0, v%d, vcc' % (m_, m_, RSEL+k, rT))
    rsel()
    if DL0: A('s_sleep %d' % DL0)
    A('s_cmp_lg_u32 %s, 0\n s_cbranch_scc1 %s_C1 ; nf' % (sW, nm))
    pa(AQ); zload(3); zload(4); A('s_waitcnt vmcnt(4)\n%s_CK:' % nm)
    red(AQ)
    for i in range(4): A('v_bitop3_b32 v%d, v%d, v%d, s28 bitop3:0x7e' % (AF+4+i, AQ+4*i, AQ+4*i+2))
    A('v_or3_b32 v%d, v%d, v%d, v%d\n v_bitop3_b32 v%d, v%d, v%d, 1 bitop3:0xa8\n v_cmp_ne_u32 vcc, 0, v%d\n s_cbranch_vccnz %s_PB ; nf' % (rT, AF+4, AF+5, AF+6, rT, rT, AF+7, rT, nm))
    A('%s_PA1:' % nm); bl(0); ts('c0')
    D = AF+8
    A('v_mov_b32 v%d, s57' % (AF+4))
    A('v_add_f32_dpp v%d, v%d, v%d %s\n v_add_f32_dpp v%d, v%d, v%d %s\n s_mov_b64 exec, s[50:51]' % (D, D, D, DPP, D+1, D+1, D+1, DPP))
    cvt(D, D)
    A('buffer_store_dword v%d, v%d, %s, %s offen%s\n buffer_store_dword v%d, v%d, %s, %s offen%s\n s_mov_b64 exec, -1' % (D, rMS, WS, sM, sc, AF+4, rMS, WS, sMO, sc))
    ts(6); zero(AQ, 24)
    if EP: A('s_cmp_lg_u32 %s, 0\n s_cbranch_scc1 %s_NZ ; nf' % (sW, nm)); zero(AQ, 24); A('%s_NZ:' % nm)
    if DLC: A('s_cmp_lg_u32 %s, 0\n s_cbranch_scc1 %s_NC\n s_sleep %d\n s_branch %s_BX\n%s_NC:' % (sW, nm, DLC, nm, nm))
    A('s_waitcnt vmcnt(%d)\n%s_BL:' % (2, nm)); qc(AF, 1, 's_cbranch_vccnz %s_BX' % nm)
    A('%s_BOK0:' % nm); ts(7)
    A('s_xor_b32 s28, s28, 1\n s_mov_b32 %s, %s\n s_add_u32 %s, %s, 10240\n s_cmp_eq_u32 %s, 0x%x\n s_cselect_b32 %s, 0x%x, %s\n s_add_u32 %s, %s, 1' % (sMO, sM, sM, sM, sM, RING_M+30720, sM, RING_M, sM, sS, sS))
    A('s_branch %s_STEP ; nf' % nm)
    def anyeq(b, n):
        A('s_mov_b64 s[96:97], 0')
        for k in range(n): A('v_cmp_eq_u32 vcc, s57, v%d\n s_or_b64 s[96:97], s[96:97], vcc' % (b+k))
        A('s_cmp_eq_u64 s[96:97], 0')
    A('%s_C1:' % nm)
    if DLY: A('s_sleep %d' % DLY)
    zload(3); zload(4)
    if DL1: A('s_sleep %d' % DL1)
    if DLA: A('s_cmp_lt_u32 %s, 64\n s_cbranch_scc1 %s_PAR2\n s_sleep %d' % (sRID, nm, DLA))
    A('%s_PAR2:' % nm); pa(AQ); A('s_waitcnt vmcnt(0)\n s_branch %s_CK' % nm)
    A('%s_NR:' % nm); ts(6); ts('c0')
    zero(AQ, 24)
    if DLZ: A('s_sleep %d' % DLZ)
    for i in LATE: zload(i)
    if DLB: A('s_sleep %d' % DLB)
    A('%s_BX:' % nm); bl(0)
    for i in range(WARM): A('v_smfmac_f32_16x16x64_bf16 %s, %s, %s, v%d' % (v((RSEL, AF+4)[i & 1], 4), v(SEL, 4), v(104, 8), rIDX))
    if DBG: A('s_add_u32 s98, s98, 1')
    A('s_add_u32 s99, s99, 1\n s_and_b32 s3, s99, 63\n s_waitcnt vmcnt(0)\n s_cbranch_scc1 %s_BL' % nm)
    anyeq(AF, 4); A('s_cbranch_scc1 %s_BOK0\n s_cmp_ge_u32 s99, 0x%x\n s_cbranch_scc1 %s_BOK0\n s_branch %s_BL' % (nm, SPIN, nm, nm))
    A('%s_PB:' % nm)
    if DBG: A('s_add_u32 s100, s100, 1')
    A('s_add_u32 s99, s99, 1\n s_cmp_lt_u32 s99, 0x%x\n s_cbranch_scc1 %s_PAR2\n s_branch %s_PA1' % (SPIN, nm, nm))
    for j in (1, 2, 3):
        A('%s_BR%d:\n v_cmp_eq_u32 vcc, s57, v%d\n s_cbranch_vccnz %s_BS%d' % (nm, j, rT, nm, j)); anyeq(BD[j], 4); A('s_cbranch_scc1 %s_BOK%d\n%s_BS%d:' % (nm, j, nm, j))
        if DBG: A('s_add_u32 s98, s98, %d' % (1, 1000, 1000000, 1000000)[j])
        A('s_add_u32 s99, s99, 1\n s_cmp_ge_u32 s99, 0x%x\n s_cbranch_scc1 %s_BOK%d' % (SPIN, nm, j))
        bl(j); A('s_waitcnt vmcnt(0)\n s_branch %s_BC%d' % (nm, j))
    A('%s_WKV:' % nm); flags()
    A('s_waitcnt vmcnt(0)\n v_cmp_ne_u32 s[48:49], 0, v%d\n s_bitcmp1_b64 s[48:49], s4\n s_cbranch_scc1 %s_KVOK' % (rFL, nm))
    A('s_add_u32 s99, s99, 1\n s_cmp_lt_u32 s99, 0x%x\n s_cbranch_scc1 %s_WKV\n s_branch %s_KVOK' % (SPIN, nm, nm))
    A('%s_FB:\n s_cmp_lg_u32 s58, 0\n s_cbranch_scc1 %s_OK\n s_mov_b32 s58, 1' % (nm, nm))
    A('v_max3_f32 v%d, v%d, v%d, v%d\n v_max3_f32 v%d, v%d, v%d, v%d\n v_max_f32_dpp v%d, v%d, v%d %s' % (L_, S, S+1, S+2, L_, L_, S+3, AQ+4, L_, L_, L_, DPP))
    xmax(A, L_, L_+1, 'v_max_f32')
    for r in (S, S+1, S+2, S+3, AQ+4): A('v_sub_f32 v%d, v%d, v%d' % (r, r, L_))
    A('s_branch %s_EXP' % nm)
    A('%s_LAST:\n s_waitcnt vmcnt(0) lgkmcnt(0)\n s_barrier' % nm)
    if DBG:
        for i, x in enumerate(AC_ + [100, 98]): A('v_mov_b32 v%d, s%d' % (16+i, x))
        A('s_mov_b32 s3, 0x1000\n s_cmp_eq_u32 %s, 2\n s_cselect_b32 s3, 160, s3\n s_cmp_eq_u32 %s, 0\n s_cselect_b32 s3, 208, s3\n s_cmp_eq_u32 %s, 5\n s_cselect_b32 s3, s3, 0x1000\n v_mov_b32 v28, s3' % (sW, sW, sH))
        A('buffer_store_dwordx4 v[16:19], v28, s[20:23], 0 offen\n buffer_store_dwordx4 v[20:23], v28, s[20:23], 0 offen offset:16\n buffer_store_dwordx2 v[24:25], v28, s[20:23], 0 offen offset:32\n s_waitcnt vmcnt(0)')
    A('s_add_u32 s49, %s, 252' % sFB); signal(A, 's49', 16, False)
    A('s_nop 7\n s_nop 7'); next_pair(A, nm)
```

```python
from k_ws import *
NQH = 32 - 2 - N_AT//3
NSET0 = 2 + N_AT//3 + NQH

def ldptr(A, d, koff, nbytes):
    A('s_load_dwordx2 s[4:5], s[0:1], %d\n s_waitcnt lgkmcnt(0)' % koff); srd(A, d, 4, nbytes)

def role_P1(A):
    A('ROLE_P1:\n s_mov_b32 s19, %s\n s_mov_b32 %s, 0\nP1_BODY:' % (sIDX, sRET))
    div3(A, sSEG0, 's19', 's19')
    ws_common(A)
    A('s_lshl_b32 s64, s19, 2\n s_add_u32 s64, s64, %s\n s_mov_b32 %s, 0\n s_cmp_ge_u32 s64, 10\n s_cbranch_scc1 P1_KVW' % (sW, sVAR))
    ldptr(A, 28, K_WQ, 640*640*2)
    A('s_lshl_b32 s65, s64, 7')
    ws_wload(A, 1280, 's65'); colsum(A, True)
    A('v_and_b32 v16, 15, v0\n v_mul_u32_u24 v16, 1280, v16\n v_lshrrev_b32 v17, 4, v0\n v_lshl_add_u32 v16, v17, 4, v16\n v_add_u32 v%d, s65, v16' % vST)
    A('s_branch P1_LOOP\nP1_KVW:\n s_sub_u32 %s, s64, 9' % sVAR)
    A('s_load_dwordx4 s[4:7], s[0:1], %d\n s_waitcnt lgkmcnt(0)\n s_cmp_eq_u32 %s, 1\n s_cselect_b64 s[4:5], s[4:5], s[6:7]' % (K_WK, sVAR)); srd(A, 28, 4, 25600)
    A('v_lshrrev_b32 v16, 4, v0\n v_lshlrev_b32 v16, 3, v16\n v_bfe_u32 v17, v0, 2, 2\n v_add_u32 v16, v16, v17\n v_mul_u32_u24 v16, 40, v16\n v_and_b32 v17, 3, v0\n v_lshl_add_u32 v16, v17, 4, v16')
    for r in range(4): A('s_add_u32 s3, %s, %d\n s_and_b32 s3, s3, 3\n s_mul_i32 s3, s3, 6400\n s_add_u32 s3, s3, s48\n v_add_u32 v%d, s3, v16' % (sW, r, 20+r))
    A('s_mov_b32 s60, 0')
    rd = [(Wreg(t, i) + 2*p, ((i % 5)*32 + 4*p)*40 + t*8, 20 + i//5) for i in range(20) for t in range(2) for p in range(2)]
    wload(A, [(WSRD, [('s60', j*1024) for j in range(25)], rd, None)], vL, vTR, 0, 's48', 3)
    for t, m in ((0, 0xf000f000), (1, 0xff00ff00)):
        A('s_mov_b32 exec_lo, 0x%x\n s_mov_b32 exec_hi, 0x%x' % (m, m))
        for i in range(20):
            for j in range(4):
                r = Wreg(t, i) + j
                A(('v_accvgpr_write_b32 %s, 0' if r >= 256 else 'v_mov_b32 %s, 0') % R(r))
    A('s_mov_b64 exec, -1\n s_cmp_eq_u32 %s, 2\n s_cbranch_scc1 P1_VW' % sVAR)
    colsum(A, True, 2)
    A('v_and_b32 v16, 15, v0\n v_lshlrev_b32 v16, 4, v16\n v_lshrrev_b32 v17, 4, v0\n v_lshl_add_u32 v%d, v17, 9, v16\n s_branch P1_LOOP\nP1_VW:' % vST)
    colsum(A, False, 2)
    A('v_bfe_u32 v16, v0, 2, 2\n v_lshlrev_b32 v16, 3, v16\n v_and_b32 v17, 3, v0\n v_add_u32 v16, v16, v17\n v_lshlrev_b32 v16, 4, v16\n v_bfe_u32 v17, v0, 4, 1\n v_lshl_add_u32 v16, v17, 9, v16\n v_lshrrev_b32 v17, 5, v0\n v_lshl_add_u32 v%d, v17, 3, v16' % vST)
    A('P1_LOOP:')
    if TL: A('s_mul_i32 s3, %s, 12\n s_add_u32 s3, s3, s64\n s_lshl_b32 s3, s3, 2\n s_add_u32 s3, s3, 0x1c000\n s_mov_b64 exec, 1' % sSEG0); stamp(A, 's3', 16, vL); A('s_mov_b64 exec, -1')
    def setup():
        A('s_lshl_b32 %s, %s, 7\n s_add_u32 %s, %s, %d\n s_mov_b32 %s, %d\n s_cmp_lg_u32 %s, 0\n s_cbranch_scc1 P1_S1' % (sFOUT, sPAIR, sFOUT, sFOUT, F_E1, sFIN, F_E7, sPAIR))
        ldptr(A, 24, K_AX, 2048*1280); src_pattern(A, True, vDS, sFS)
        A('s_mov_b32 %s, 0\n s_mov_b32 %s, 0\n s_mov_b32 %s, %d\n s_branch P1_S2\nP1_S1:' % (sSRC, sTGT, sSTEP, NSET0))
        copy_ws(A, 24); src_pattern(A, False, vDS, sFS)
        A('s_mov_b32 %s, 0x%x\n s_mov_b32 %s, 40\n s_mov_b32 %s, 2\nP1_S2:' % (sSRC, PB0+O_X2, sTGT, sSTEP))
    def vq():
        gemm(A, True, 4, True); stats(A, True, SC_A); lnfix(A, True, 4)
        A('s_mul_i32 s49, %s, 40960\n s_add_u32 s49, s49, %s\n s_add_u32 s59, s49, 20480' % (sSEG, sPB))
        for mt in range(2):
            for u in range(2):
                d = 20 + (mt*2+u)*4; packT(A, mt, u, d)
                A('buffer_store_dwordx4 %s, v%d, %s, s%d offen offset:%d sc1' % (v(d, 4), vST, WS, (49, 59)[mt], u*64))
    def vk():
        gemm(A, True, 2, True); stats(A, True); lnfix(A, True, 2)
        A('s_lshl_b32 s49, %s, 12\n s_add_u32 s49, s49, %s\n s_add_u32 s49, s49, 0x%x' % (sSEG, sPB, O_KP))
        for mt in range(2):
            packT(A, mt, 0, 20+4*mt)
            A('buffer_store_dwordx4 %s, v%d, %s, s49 offen offset:%d sc1' % (v(20+4*mt, 4), vST, WS, mt*256))
    def vv():
        gemm(A, False, 2, True); stats(A, False); lnfix(A, False, 2)
        A('s_lshl_b32 s49, %s, 12\n s_add_u32 s49, s49, %s\n s_add_u32 s49, s49, 0x%x' % (sSEG, sPB, O_KP))
        for t in range(2):
            packN(A, t, 40+4*t)
            if t == 1:
                A('s_mov_b32 exec_lo, 0x01000100\n s_mov_b32 exec_hi, 0x01000100')
                for k in range(4): A('v_mov_b32 v%d, 0x3f803f80' % (44+k))
                A('s_mov_b64 exec, -1')
            for mt in range(2): A('buffer_store_dwordx2 %s, v%d, %s, s49 offen offset:%d sc1' % (v(40+4*t+2*mt, 2), vST, WS, 2048 + mt*1024 + t*64))
    def done():
        A('s_cmp_eq_u32 %s, 1\n s_cbranch_scc1 AT_BODY\n s_cmp_eq_u32 %s, 2\n s_cbranch_scc1 QA_BODY' % (sRET, sRET)); next_pair(A, 'P1')
    ws_loop(A, 'P1', setup, [vq, vk, vv], None, True, done)

def resid(A, d, res, src):
    for k in range(4):
        A('v_cvt_pk_bf16_f32 v56, v%d, v%d\n v_lshlrev_b32 v57, 16, v%d\n v_and_b32 v58, 0xffff0000, v%d' % (src+2*k, src+2*k+1, res+k, res+k))
        A('v_lshlrev_b32 v59, 16, v56\n v_and_b32 v56, 0xffff0000, v56\n v_add_f32 v57, v57, v59\n v_add_f32 v58, v58, v56\n v_cvt_pk_bf16_f32 v%d, v57, v58' % (d+k))

def role_AO(A):
    A('ROLE_AO:'); div3(A, sSEG0, 's19', sIDX); ws_common(A)
    A('s_lshl_b32 s64, s19, 2\n s_add_u32 s64, s64, %s\n s_mov_b32 %s, 1\n s_mov_b32 %s, 2\n s_cmp_ge_u32 s64, 10\n s_cbranch_scc1 AO_LOOP\n s_mov_b32 %s, 0' % (sW, sVAR, sSTEP, sVAR))
    ldptr(A, 28, K_WO, 640*640*2)
    A('s_lshl_b32 s65, s64, 7'); ws_wload(A, 1280, 's65')
    A('AO_LOOP:'); copy_ws(A, 24); src_pattern(A, True, vDS, sFS)
    def setup():
        A('s_lshl_b32 s3, %s, 13\n s_add_u32 %s, s3, %d\n s_add_u32 %s, s3, %d\n s_mov_b32 %s, 32\n s_add_u32 %s, %s, 0x%x' % (sPAIR, sFIN, F_E2, sFOUT, F_E3, sTGT, sSRC, sPB, O_OA))
        A('s_cmp_lg_u32 %s, 0\n s_cbranch_scc1 AO_S1' % sPAIR)
        ldptr(A, 28, K_AX, 2048*1280); src_pattern(A, True, vRS, sRFS, False)
        A('s_mov_b32 %s, 0\n s_branch AO_S2\nAO_S1:' % sRES)
        copy_ws(A, 28); src_pattern(A, False, vRS, sRFS, False)
        A('s_mov_b32 %s, 0x%x\nAO_S2:\n s_lshl_b32 s3, s64, 1\n s_mul_i32 s59, s3, %s\n s_add_u32 %s, %s, s59' % (sRES, PB0+O_X2, sRFS, sRES, sRES))
        A('s_lshl_b32 s3, s3, 10\n s_add_u32 %s, s3, %s\n s_add_u32 %s, %s, 0x%x' % (sOUT, sPB, sOUT, sOUT, O_X1))
    def v0_():
        A('s_mul_i32 s49, %s, 40960\n s_add_u32 s3, s49, %s' % (sSEG, sRES))
        for mt in range(2):
            A('s_add_u32 s59, s3, %s\n buffer_load_dwordx4 %s, v%d, %s, s3 offen sc1\n buffer_load_dwordx4 %s, v%d, %s, s59 offen sc1\n s_add_u32 s3, s3, 20480' % (sRFS, v(20+mt*8, 4), vRS, WSRD, v(24+mt*8, 4), vRS, WSRD))
        gemm(A, True, 4, False)
        A('s_mul_i32 s49, %s, 40960\n s_add_u32 s49, s49, %s\n s_add_u32 s59, s49, 20480' % (sSEG, sOUT))
        for mt in range(2):
            for u in range(2):
                d = 36 + (mt*2+u)*4; resid(A, d, 20+(mt*2+u)*4, ACC+(mt*4+2*u)*4)
                A('buffer_store_dwordx4 %s, v%d, %s, s%d offen offset:%d sc1' % (v(d, 4), vL, WS, (49, 59)[mt], u*1024))
    def v1_(): gemm(A, True, 0, False)
    ws_loop(A, 'AO', setup, [v0_, v1_], 7, True, lambda: next_pair(A, 'AO'))

def role_KV(A):
    A('ROLE_KV:\n s_and_b32 s19, %s, 31\n s_lshr_b32 %s, %s, 5\n s_mov_b32 %s, %d' % (sIDX, sSEG0, sIDX, sSTEP, N_KV//32)); ws_common(A)
    A('s_lshr_b32 %s, %s, 1' % (sVAR, sW))
    A('s_load_dwordx4 s[4:7], s[0:1], %d\n s_waitcnt lgkmcnt(0)\n s_cmp_eq_u32 %s, 0\n s_cselect_b64 s[4:5], s[4:5], s[6:7]' % (K_BWK, sVAR)); srd(A, 28, 4, 640*8192)
    A('s_and_b32 s64, %s, 1\n s_lshl_b32 s65, s19, 8\n s_lshl_b32 s3, s64, 7\n s_add_u32 s65, s65, s3' % sW)
    ws_wload(A, 8192, 's65')
    A('s_cmp_eq_u32 %s, 1\n s_cbranch_scc1 KV_C1' % sVAR); colsum(A, True); A('s_branch KV_C2\nKV_C1:'); colsum(A, False); A('KV_C2:')
    copy_ws(A, 24); src_pattern(A, False, vDS, sFS)
    def setup():
        A('s_lshl_b32 s3, %s, 13\n s_add_u32 %s, s3, %d\n s_lshl_b32 s59, s19, 8\n s_add_u32 s3, s3, s59\n s_add_u32 %s, s3, %d\n s_mov_b32 %s, 3\n s_add_u32 %s, %s, 0x%x' % (sPAIR, sFIN, F_E3, sFOUT, F_KV, sTGT, sSRC, sPB, O_X1))
        A('s_lshl_b32 s3, s19, 14\n s_lshl_b32 s59, s64, 13\n s_add_u32 s3, s3, s59\n s_add_u32 s3, s3, %s\n s_add_u32 %s, s3, 0x%x' % (sPB, sOUT, O_KV))
    def vk():
        gemm(A, True, 4, True); stats(A, True, SC_B); lnfix(A, True, 4)
        A('s_lshl_b32 s49, %s, 19\n s_add_u32 s49, s49, %s\n s_add_u32 s59, s49, 4096' % (sSEG, sOUT))
        for mt in range(2):
            for u in range(2):
                d = 20 + (mt*2+u)*4; packT(A, mt, u, d)
                A('buffer_store_dwordx4 %s, v%d, %s, s%d offen offset:%d sc1' % (v(d, 4), vL, WS, (49, 59)[u], mt*1024))
    def vv():
        gemm(A, False, 4, True); stats(A, False); lnfix(A, False, 4)
        A('s_lshl_b32 s49, %s, 19\n s_add_u32 s49, s49, %s\n s_add_u32 s59, s49, 4096' % (sSEG, sOUT))
        for t in range(4):
            packN(A, t, 40+4*t)
            A('buffer_store_dwordx4 %s, v%d, %s, s%d offen offset:%d sc1' % (v(40+4*t, 4), vL, WS, (49, 59)[t >> 1], 2048 + (t & 1)*1024))
    ws_loop(A, 'KV', setup, [vk, vv], 2, False, lambda: next_pair(A, 'KV'))
```

```python
from k_roles1 import *
def role_AT(A):
    SA, SB, NM, O, P, Q, QN = 32, 48, 64, 80, 96, 104, 112
    sTOK, sCNT, sRED = 's32', 's33', 's34'
    A('ROLE_AT:\n s_and_b32 s3, %s, %d\n s_cbranch_scc0 AT_BODY\n s_cmp_lg_u32 %s, 0\n s_cbranch_scc1 AT_BODY\n s_cmp_ge_u32 %s, %d\n s_cbranch_scc1 AT_BODY' % (sMASK, M_P1, sPAIR, sIDX, (N_AT//3)*3))
    A('s_add_u32 s19, %s, 6\n s_mov_b32 %s, 1\n s_branch P1_BODY' % (sIDX, sRET))
    A('AT_BODY:\n s_and_b32 s3, %s, %d\n s_cbranch_scc0 EXIT2' % (sMASK, M_AT))
    A('v_and_b32 v16, 31, v0\n v_lshrrev_b32 v17, 5, v0\n v_mul_u32_u24 v18, 40, v16\n v_lshl_add_u32 v1, v17, 4, v18\n v_add_u32 v2, 32, v18\n v_lshl_add_u32 v2, v17, 30, v2')
    A('v_lshlrev_b32 v3, 4, v0\n s_lshl_b32 s3, %s, 16\n v_add_u32 v3, s3, v3' % sW)
    A('v_mul_u32_u24 v5, 112, v16\n v_lshl_add_u32 v5, v17, 4, v5\n s_mul_i32 s3, %s, 3584\n v_add_u32 v5, s3, v5' % sW)
    for k in range(3):
        A('v_add_u32 v18, %d, v0\n v_min_u32 v18, 159, v18\n v_mul_u32_u24 v19, 205, v18\n v_lshrrev_b32 v19, 10, v19\n v_mul_u32_u24 v20, 5, v19\n v_sub_u32 v20, v18, v20' % (64*k))
        A('v_mul_u32_u24 v%d, 112, v19\n v_lshl_add_u32 v%d, v20, 4, v%d' % (10+k, 6+k, 10+k))
    A('v_lshlrev_b32 v9, 3, v0\n v_mov_b32 v%d, 0\n v_mov_b32 v%d, 0\n v_cmp_eq_u32 s[50:51], 20, v16\n s_mov_b32 %s, 0' % (Q+6, Q+7, sCNT))
    A('s_mov_b32 s35, 14336')
    A('AT_PAIR:'); set_pb(A)
    A('s_lshl_b32 s49, %s, 7\n s_add_u32 s49, s49, %d' % (sPAIR, F_E1))
    A('s_cmp_lt_u32 %s, 3\n s_cselect_b32 s3, %s, 0\n s_lshl_b32 s3, s3, 3\n s_sub_u32 s37, 192, s3' % (sW, sPAIR))
    poll(A, 's49', 's37', 14, 58)
    A('s_mov_b32 %s, %s\n s_mul_i32 s3, %s, 1280\n s_add_u32 s3, s3, %s' % (sTOK, sIDX, sTOK, sPB))
    A('buffer_load_dwordx4 %s, v1, %s, s3 offen sc1\n buffer_load_dwordx2 %s, v2, %s, s3 offen sc1' % (v(QN, 4), WS, v(QN+4, 2), WS))
    A('s_add_u32 s36, %s, 0x%x' % (sPB, O_KP))
    for i in range(16):
        for k in range(4): A('buffer_load_dwordx4 %s, v3, %s, s36 offen offset:%d sc1' % (a((k >> 1)*128+i*8+(k & 1)*4, 4), WS, k*1024))
        A('s_add_u32 s36, s36, 4096')
        if i == 11: A('s_waitcnt vmcnt(10)')
    def qk(i, d, c):
        A('v_mfma_f32_32x32x16_bf16 %s, %s, %s, %s' % (v(d, 16), a(i*8, 4), v(Q, 4), c))
        return 'v_mfma_f32_32x32x16_bf16 %s, %s, %s, %s' % (v(d, 16), a(i*8+4, 4), v(Q+4, 4), v(d, 16))
    def tmax(d, first):
        A(('v_max3_f32 v16, v%d, v%d, v%d' % (d, d+1, d+15)) if first else ('v_max3_f32 v16, v16, v%d, v%d\n v_max_f32 v16, v16, v%d' % (d, d+1, d+15)))
        for k in range(1, 7): A('v_max3_f32 v16, v16, v%d, v%d' % (d+2*k, d+2*k+1))
        A('v_max_f32 v16, v16, v%d' % (d+14))
    def nextq(k_):
        A('s_waitcnt vmcnt(0)')
        for k in range(6): A('v_mov_b32 v%d, v%d' % (Q+k, QN+k))
        A('s_add_u32 s3, %s, %d\n s_min_u32 s3, s3, 2047\n s_mul_i32 s3, s3, 1280\n s_add_u32 s3, s3, %s' % (sTOK, k_*N_AT, sPB))
        A('buffer_load_dwordx4 %s, v1, %s, s3 offen sc1\n buffer_load_dwordx2 %s, v2, %s, s3 offen sc1' % (v(QN, 4), WS, v(QN+4, 2), WS))
    def flush():
        l = A.lab('ATF')
        A('s_cmp_eq_u32 s38, 0\n s_cbranch_scc1 %s ; nf\n s_mov_b64 exec, 1\n v_mov_b32 v14, 0\n v_mov_b32 v15, 1\n s_waitcnt vmcnt(0)\n buffer_atomic_add v15, v14, %s, s38 offen sc1' % (l, WS))
        stamp(A, 's38', 15, 14); A('s_mov_b64 exec, -1\n s_mov_b32 s38, 0\n%s:' % l)
    nextq(1)
    A('s_mov_b32 s38, 0\nAT_TOK:\n s_mov_b32 %s, 0' % sRED)
    A(qk(0, SA, '0')); tmax(SA, True)
    A('AT_HAVEM:\n v_mov_b32 v17, v16\n v_permlane32_swap_b32 v16, v17\n v_max_f32 v16, v16, v17')
    for r in range(16): A('v_sub_f32 v%d, 0, v16' % (NM+r))
    A(qk(0, SA, v(NM, 16)))
    for i in range(16):
        S = (SA, SB)[i & 1]; N = (SB, SA)[i & 1]
        ex = lambda lo, hi: [A('v_exp_f32 v%d, v%d' % (S+r, S+r)) for r in range(lo, hi)]
        cv = lambda lo, hi: [A('v_cvt_pk_bf16_f32 v%d, v%d, v%d' % (P+k, S+2*k, S+2*k+1)) for k in range(lo, hi)]
        pv = lambda t: A('v_mfma_f32_32x32x16_bf16 %s, %s, %s, %s' % (v(O, 16), a(128+i*8+t*4, 4), v(P+4*t, 4), '0' if (i == 0 and t == 0) else v(O, 16)))
        if i == 3: flush()
        nx = qk(i+1, N, v(NM, 16)) if i < 15 else None
        ex(0, 4)
        if nx: A(nx)
        ex(4, 8); cv(0, 4); ex(8, 10); pv(0); ex(10, 16); cv(4, 8); A('s_nop 1'); pv(1)
    A('v_mov_b32 v18, 0x71800000\n v_cmp_nlt_f32 vcc, v%d, v18\n s_cmp_lg_u32 %s, 0\n s_cbranch_scc1 AT_OK\n s_cmp_eq_u32 vcc_hi, 0\n s_cbranch_scc1 AT_OK' % (O+8, sRED))
    for i in range(16): A(qk(i, SA, '0')); tmax(SA, i == 0)
    A('s_mov_b32 %s, 1\n s_branch AT_HAVEM\nAT_OK:' % sRED)
    for k in range(3): A('ds_write_b128 v5, %s offset:%d' % (v(O+4*k, 4), 32*k))
    A('s_mov_b64 exec, 0xffffffff\n ds_write_b32 v5, v16 offset:96\n s_mov_b64 exec, -1'); nextq(2); A('s_waitcnt lgkmcnt(0)\n s_barrier')
    A('s_and_b32 s3, %s, 3\n s_cmp_lg_u32 s3, %s\n s_cbranch_scc1 AT_NEXT' % (sCNT, sW))
    A('s_mul_i32 s36, %s, 1280\n s_add_u32 s36, s36, %s\n s_add_u32 s36, s36, 0x%x' % (sTOK, sPB, O_OA))
    for k in range(3):
        b = 32 + k*24
        for w in range(4):
            A('ds_read_b128 %s, v%d offset:%d\n ds_read_b32 v%d, v%d offset:%d\n ds_read_b32 v%d, v%d offset:%d' % (v(b+4*w, 4), 6+k, w*3584, b+16+w, 10+k, w*3584+80, b+20+w, 10+k, w*3584+96))
        A('s_waitcnt lgkmcnt(0)')
    for k in range(3):
        b = 32 + k*24
        A('v_max3_f32 v18, v%d, v%d, v%d\n v_max_f32 v18, v18, v%d' % (b+20, b+21, b+22, b+23))
        for w in range(4): A('v_sub_f32 v%d, v%d, v18\n v_exp_f32 v%d, v%d' % (b+20+w, b+20+w, b+20+w, b+20+w))
        A('v_mul_f32 v19, v%d, v%d' % (b+16, b+20))
        for w in range(1, 4): A('v_fmac_f32 v19, v%d, v%d' % (b+16+w, b+20+w))
        A('v_rcp_f32 v19, v19')
        for j in range(4):
            A('v_mul_f32 v%d, v%d, v%d' % (b+j, b+j, b+20))
            for w in range(1, 4): A('v_fmac_f32 v%d, v%d, v%d' % (b+j, b+4*w+j, b+20+w))
            A('v_mul_f32 v%d, v%d, v19' % (b+j, b+j))
        A('v_cvt_pk_bf16_f32 v%d, v%d, v%d\n v_cvt_pk_bf16_f32 v%d, v%d, v%d' % (20+2*k, b, b+1, 21+2*k, b+2, b+3))
        if k == 2: A('s_mov_b64 exec, 0xffffffff')
        A('buffer_store_dwordx2 %s, v9, %s, s36 offen offset:%d sc1' % (v(20+2*k, 2), WS, k*512))
    A('s_lshr_b32 s3, %s, 5\n s_lshl_b32 s3, s3, 7\n s_lshl_b32 s49, %s, 13\n s_add_u32 s49, s49, s3\n s_add_u32 s49, s49, %d' % (sTOK, sPAIR, F_E2))
    A('s_mov_b64 exec, -1\n s_mov_b32 s38, s49')
    A('AT_NEXT:')
    for r in (5, 6, 7, 8, 10, 11, 12): A('v_add_u32 v%d, s35, v%d' % (r, r))
    A('s_sub_u32 s35, 0, s35\n s_add_u32 %s, %s, 1\n s_add_u32 %s, %s, %d\n s_cmp_lt_u32 %s, 2048\n s_cbranch_scc1 AT_TOK' % (sCNT, sCNT, sTOK, sTOK, N_AT, sTOK))
    flush()
    A('s_waitcnt vmcnt(0)\n s_add_u32 %s, %s, 1\n s_cmp_lt_u32 %s, %s\n s_cbranch_scc1 AT_PAIR\nEXIT2:\n s_endpgm' % (sPAIR, sPAIR, sPAIR, sPEND))
```

```python
from g import *
F_E1 = 0x0
F_E2 = 0x1000; F_E3 = 0x5000; F_E6 = 0x9000; F_E7 = 0xD000
F_KV = 0x11000; F_KM = 0x15000
F_TEAM = 0x19000
FLAG_BYTES = 0x20000
RING_P = 0x100000; RING_M = 0x1C0000; RW = 0x200000
PB0 = 0x1000000; PBS = 0x6000000
O_Q = 0; O_KP = 0x300000; O_VT = 0x320000; O_OA = 0x400000; O_X1 = 0x700000; O_X2 = 0xA00000
O_KV = 0x1000000; O_KM = 0x3000000; O_OB = 0x4000000
WSB = 0x10000000
K_AX, K_WQ, K_WK, K_WV, K_WO, K_BX, K_MEM0, K_BWQ, K_BWK, K_BWV, K_BWO, K_SEG, K_OUT, K_DBG, K_WS = [8*i for i in range(15)]
N_KV, N_QA, N_BO, N_AO, N_P1 = 64, 48, 40, 6, 6
N_AT = 224 - N_KV - N_QA - N_BO - N_AO - N_P1
M_P1, M_AT, M_AO, M_KV, M_R, M_QA, M_BO = 1, 2, 4, 8, 16, 32, 64
WS = 's[8:11]'; sIDX = 's12'; sW = 's13'; sPAIR = 's14'; sPEND = 's15'; sMASK = 's16'; sPB = 's17'; sXCC = 's18'
SPIN = 0x80000
import os
TL = int(os.environ.get('TL', '0'))
ONE = int(os.environ.get('ONE', '0')); PSL_ = int(os.environ.get('PSLEEP', '1'))
def stamp(A, sflag, vt, vz):
    if TL: A('s_memrealtime s[100:101]\n s_waitcnt lgkmcnt(0)\n v_mov_b32 v%d, s100\n s_add_u32 s101, %s, 0x80000\n buffer_store_dword v%d, v%d, %s, s101 offen' % (vt, sflag, vt, vz, WS))

def poll(A, sflag, target, vt, st, sleep=1):
    l = A.lab('POLL'); d = A.lab('POLLD')
    A('v_mov_b32 v%d, 0' % vt)
    A('%s:\n buffer_load_dword v%d, v%d, %s, %s offen sc1\n s_waitcnt vmcnt(0)\n v_readfirstlane_b32 s%d, v%d' % (l, vt+1, vt, WS, sflag, st, vt+1))
    A('s_cmp_ge_u32 s%d, %s\n s_cbranch_scc1 %s' % (st, target, d))
    A('s_add_u32 s99, s99, 1\n s_cmp_ge_u32 s99, 0x%x\n s_cbranch_scc1 %s' % (SPIN, d))
    if sleep: A('s_sleep %d' % (sleep*PSL_))
    A('s_branch %s\n%s:' % (l, d))

def signal(A, sflag, vt, atomic=True):
    l = A.lab('SIG')
    A('s_cmp_lg_u32 %s, 0\n s_cbranch_scc1 %s' % (sW, l))
    A('v_mov_b32 v%d, 0\n v_mov_b32 v%d, 1\n s_mov_b64 exec, 1' % (vt, vt+1))
    if atomic: A('buffer_atomic_add v%d, v%d, %s, %s offen sc1' % (vt+1, vt, WS, sflag))
    else: A('buffer_store_dword v%d, v%d, %s, %s offen sc1' % (vt+1, vt, WS, sflag))
    stamp(A, sflag, vt+1, vt)
    A('s_mov_b64 exec, -1\n%s:' % l)

def wload(A, rounds, vdma, vtr, half_bytes, sbase, st):
    def dma(i):
        s, so, _, _ = rounds[i]
        for j, (b, c) in enumerate(so):
            A('s_add_u32 m0, %s, %d\n s_add_u32 s%d, %s, 0x%x' % (sbase, (i & 1)*half_bytes + j*1024, st, b, c))
            A('buffer_load_dwordx4 v%d, %s, s%d offen lds' % (vdma[s] if isinstance(vdma, dict) else vdma, s, st), tag=('dma', i))
    dma(0)
    if len(rounds) > 1: dma(1)
    for i, (s, so, rd, post) in enumerate(rounds):
        A.wait(vm=('dma', i))
        for item in rd:
            if callable(item): item(); continue
            d, imm = item[:2]; va = item[2] if len(item) > 2 else vtr
            A('ds_read_b64_tr_b16 %s, v%d offset:%d' % (R(d, 2), va, (i & 1)*half_bytes + imm))
        A('s_waitcnt lgkmcnt(0)')
        if post: post()
        if i + 2 < len(rounds): dma(i+2)

def entry(A, name, mask, p0, p1):
    A.begin(name)
    A('s_mov_b32 %s, %d\n s_mov_b32 %s, %d\n s_mov_b32 %s, %d\n s_branch MAIN' % (sMASK, mask, sPAIR, p0, sPEND, p1))
    A.desc(name, 256, 256)

def init_kernel(A):
    A.begin('init_kernel')
    A('s_load_dwordx2 s[4:5], s[0:1], %d\n s_waitcnt lgkmcnt(0)' % K_WS)
    srd(A, 8, 4, FLAG_BYTES)
    A('s_lshl_b32 s3, s2, 12\n v_lshlrev_b32 v1, 4, v0\n v_add_u32 v1, s3, v1')
    for i in range(4): A('v_mov_b32 v%d, 0' % (4+i))
    A('buffer_store_dwordx4 v[4:7], v1, s[8:11], 0 offen\n s_endpgm')
    A.desc('init_kernel', 8, 0, 16)

def main_head(A):
    A('MAIN:\n s_mov_b32 s99, 0\n s_cmp_ge_u32 s2, 256\n s_cbranch_scc1 EXIT')
    A('s_load_dwordx2 s[4:5], s[0:1], %d\n s_load_dwordx2 s[6:7], s[0:1], %d' % (K_WS, K_DBG))
    A('s_getreg_b32 %s, hwreg(HW_REG_XCC_ID)\n s_and_b32 %s, %s, 7' % (sXCC, sXCC, sXCC))
    A('v_lshrrev_b32 v1, 6, v0\n v_and_b32 v0, 63, v0\n v_readfirstlane_b32 %s, v1\n s_waitcnt lgkmcnt(0)' % sW)
    srd(A, 8, 4, WSB); srd(A, 20, 6, 256)
    if TL: A('s_mov_b64 exec, 1\n v_mov_b32 v2, 0\n s_lshl_b32 s3, s2, 2\n s_add_u32 s3, s3, 0x1a000'); stamp(A, 's3', 3, 2); A('s_mov_b64 exec, -1')
    A('s_cmp_lg_u32 %s, 0\n s_cbranch_scc1 TK_DONE' % sW)
    if ONE:
        A('s_lshl_b32 s3, s2, 9\n v_lshlrev_b32 v2, 3, v0\n v_mov_b32 v4, 0\n v_mov_b32 v5, 0\n buffer_store_dwordx2 v[4:5], v2, %s, s3 offen sc1\n s_waitcnt vmcnt(0)' % WS)
    A('s_lshl_b32 s3, %s, 4\n v_mov_b32 v2, s3\n v_mov_b32 v3, 1\n s_mov_b64 exec, 1' % sXCC)
    A('buffer_atomic_add v3, v2, s[20:23], 0 offen sc0 sc1\n s_waitcnt vmcnt(0)\n s_mov_b64 exec, -1\n v_readfirstlane_b32 s3, v3')
    A('s_lshl_b32 s24, %s, 5\n s_add_u32 s24, s24, s3\n s_cmp_lt_u32 s3, 32\n s_cbranch_scc1 TK_HAVE' % sXCC)
    A('v_mov_b32 v2, 128\n v_mov_b32 v3, 1\n s_mov_b64 exec, 1\n buffer_atomic_add v3, v2, s[20:23], 0 offen sc0 sc1\n s_waitcnt vmcnt(0)\n s_mov_b64 exec, -1\n v_readfirstlane_b32 s25, v3')
    A('v_and_b32 v2, 7, v0\n v_lshlrev_b32 v2, 4, v2\n s_mov_b32 s27, 0')
    A('TK_W:\n buffer_load_dword v3, v2, s[20:23], 0 offen sc1\n s_waitcnt vmcnt(0)\n s_mov_b32 s26, 0')
    for i in range(8): A('v_readlane_b32 s%d, v3, %d\n s_add_u32 s26, s26, s%d' % (30+i, i, 30+i))
    A('s_add_u32 s27, s27, 1\n s_cmp_ge_u32 s27, 0x%x\n s_cbranch_scc1 TK_S\n s_cmp_lt_u32 s26, 256\n s_cbranch_scc1 TK_W\nTK_S:' % SPIN)
    A('s_mov_b32 s24, 0')
    for i in range(8):
        n = A.lab('TKN')
        A('s_min_u32 s26, s%d, 32\n s_sub_u32 s27, 32, s26\n s_cmp_ge_u32 s25, s27\n s_cbranch_scc1 %s' % (30+i, n))
        A('s_add_u32 s24, s26, s25\n s_add_u32 s24, s24, %d\n s_branch TK_HAVE\n%s:\n s_sub_u32 s25, s25, s27' % (32*i, n))
    A('TK_HAVE:')
    if ONE:
        A('v_and_b32 v2, 7, v0\n v_lshlrev_b32 v2, 4, v2\nTK_A:\n buffer_load_dword v3, v2, s[20:23], 0 offen sc1\n s_waitcnt vmcnt(0)\n s_mov_b32 s26, 0')
        for i in range(8): A('v_readlane_b32 s30, v3, %d\n s_add_u32 s26, s26, s30' % i)
        A('s_add_u32 s99, s99, 1\n s_cmp_ge_u32 s99, 0x%x\n s_cbranch_scc1 TK_B\n s_cmp_lt_u32 s26, 256\n s_cbranch_scc1 TK_A\nTK_B:' % SPIN)
    A('v_mov_b32 v2, 0\n v_mov_b32 v3, s24\n ds_write_b32 v2, v3\n s_waitcnt lgkmcnt(0)')
    A('TK_DONE:\n s_barrier\n v_mov_b32 v2, 0\n ds_read_b32 v3, v2\n s_waitcnt lgkmcnt(0)\n v_readfirstlane_b32 %s, v3\n s_barrier' % sIDX)
    b = 0
    for nm, n, m in (('R', 32, M_R), ('KV', N_KV, M_KV), ('QA', N_QA, M_QA | M_P1), ('BO', N_BO, M_BO), ('AO', N_AO, M_AO), ('P1', N_P1, M_P1), ('AT', N_AT, M_AT | M_P1)):
        nx = A.lab('RD')
        A('s_cmp_ge_u32 %s, %d\n s_cbranch_scc1 %s\n s_and_b32 s3, %s, %d\n s_cbranch_scc0 EXIT\n s_branch ROLE_%s\n%s:\n s_sub_u32 %s, %s, %d' % (sIDX, n, nx, sMASK, m, nm, nx, sIDX, sIDX, n))
    A('EXIT:\n s_endpgm')

def set_pb(A):
    A('s_mul_i32 %s, %s, 0x%x\n s_add_u32 %s, %s, 0x%x' % (sPB, sPAIR, PBS, sPB, sPB, PB0))
```

```python
from k_r import *
DLA = int(os.environ.get('DLA', '1')); DLB = int(os.environ.get('DLB', '6')); L1N = int(os.environ.get('L1N', '0')); KVF = os.environ.get('KVF', 'nt'); PFF = os.environ.get('PFF', 'sc1')
EP = int(os.environ.get('EP', '0')); PFV = int(os.environ.get('PFV', '0')); VXN = int(os.environ.get('VXN', '37'))
ZL_ = int(os.environ.get('ZL', '0')); LATE = [3, 4] if ZL[3] == 4 else []
DL1 = int(os.environ.get('DL1', '1')); DLZ = int(os.environ.get('DLZ', '2')); STB = int(os.environ.get('STB', '1'))
B2N = int(os.environ.get('B2N', '1')); B3N = int(os.environ.get('B3N', '15')); BQ = int(os.environ.get('BQ', '2'))
KMF = os.environ.get('KMF', 'sc1')
WARM = int(os.environ.get('WARM', '0'))
DL0 = int(os.environ.get('DL0', '0')); DLC = int(os.environ.get('DLC', '0'))
DLY = int(os.environ.get('DLY', '1'))
KMP = int(os.environ.get('KMP', '0'))
FLN = int(os.environ.get('FLN', '42'))
PZ = int(os.environ.get('PZ', '3'))
RL = int(os.environ.get('RL', '0'))
def body(A, nm, sc):
    st = {'k': 0}
    AC_ = [42, 43, 44, 45, 46, 47, 52, 53]
    def ts(i):
        if DBG == 2: i = {0: 0, 'b1': 1, 'b2': 2, 1: 3, 4: 4, 5: 5, 'c0': 6, 7: 7, 8: 8}.get(i)
        if not isinstance(i, int) or (st.get('nots') and i in (6, 7)): return
        if DBG: A('s_mem%stime s[%d:%d]' % ('real' if DBG == 2 else '', 78+2*i, 79+2*i))
    def zl(i, hs):
        if 'NOZ' in X_ and st.get('loop'): return
        A('buffer_load_dwordx4 %s, v%d, %s, s%d offen offset:%d%s' % (v(P(ZP[ZL[i]])+4*hs, 4), rL, WS, 64+i//2, (i & 1)*2048 + hs*1024, '' if i < L1N else ' sc1'), tag=('Z', i))
    def zload(i): zl(i, 0); zl(i, 1)
    def lload(i):
        if 'NOL' in X_ and 1 < i < L2: return
        for hs in range(2): A('ds_read_b128 %s, v%d offset:%d' % (v(P(4+i % 2)+4*hs, 4), rLW, i*2048 + hs*1024), tag=('L', i))
    SL = (AF, AF+4, AF+8, RSEL)
    def ASL(i): return SL[(1, 3, 0, 3, 0, 2, 3, 3, 0, 2, 1, 3, 0, 2)[i]]
    def aload(i):
        p = OTH[i]
        if p == 9: A('v_add_u32 v%d, s56, v%d' % (rT, rL))
        else: A('v_xor_b32 v%d, %d, v%d' % (rT, (p & 3)*1024, rW2))
        A('ds_read_b128 %s, v%d offset:%d' % (v(ASL(i), 4), rT, 4096 if 4 < p < 9 else 0), tag=('A', i))
    BD = (AF, AF+8, AF+4, RSEL)
    def bl(j): A('buffer_load_dwordx4 %s, v%d, %s, %s offen sc1' % (v(BD[j], 4), rL if j >= 2 else rW2, WS, (sM, 's7', 's59', 's62')[j]), tag=('B', j))
    def bchk(j):
        A.wait(vm=('B', j)); b = BD[j]
        A('%s_BC%d:\n v_max3_u32 v%d, v%d, v%d, v%d\n v_max_u32 v%d, v%d, v%d' % (nm, j, rT, b, b+1, b+2, rT, rT, b+3))
        A('v_cmp_le_u32 vcc, s63, v%d\n s_cbranch_vccnz %s_BR%d ; nf\n%s_BOK%d:' % (rT, nm, j, nm, j))
    def mw(j): A('ds_write_b128 v%d, %s offset:%d' % (rW2, v(BD[j], 4), 4096*j), tag='mw')
    def pa(d=P(4)):
        for i in range(4): A('buffer_load_dwordx4 %s, v%d, %s, %s offen offset:%d sc1' % (v(d+4*i, 4), rRL, WS, sP, i*1024), tag=('pa', i))
    def qc(b, st_, br): A('v_max3_u32 v%d, v%d, v%d, v%d\n v_max_u32 v%d, v%d, v%d\n v_cmp_le_u32 vcc, s63, v%d\n %s ; nf' % (rT, b, b+st_, b+2*st_, rT, rT, b+3*st_, rT, br))
    def red(b):
        for i in range(4): A('v_mfma_f32_16x16x32_bf16 %s, %s, %s, %s' % (v(AF+8, 4), v(RSEL, 4), v(b+4*i, 4), v(AF+8, 4) if i else '0'))
    def by(): A('buffer_load_dwordx4 %s, v%d, %s, %s offen sc1' % (v(AF+4, 4), rW2, WS, sM))
    def epa():
        A('s_cmp_lg_u32 %s, 0\n s_cbranch_scc1 %s_NEP ; nf' % (sW, nm)); q = list(A.vq); pa(); A('%s_NEP:' % nm); A.vq = q
    def pfv(): A('v_lshlrev_b32 v%d, 3, v%d\n s_mov_b64 exec, 0xffff\n buffer_load_dword v%d, v%d, %s, s4 offen %s\n s_mov_b64 exec, -1' % (rT, rL, rFL, rT, WS, PFF))
    def kvl(d, off, tag, so='s72'): A('buffer_load_dwordx4 %s, v%d, %s, %s offen offset:%d %s' % (v(d, 4), rL, WS, so, off, KVF), tag=tag)
    def rst(u): A('buffer_store_dwordx2 %s, v%d, %s, %s offen%s' % (v(AQ+12, 2), rPS, WS, ('s28', 's29', 's30', 's77', 's54')[u], sc))
    sal = ['s_add_u32 s4, %s, 1\n s_min_u32 s4, s4, 63' % sS, 's_bitcmp1_b64 s[48:49], s4\n s_cbranch_scc0 %s_WKV ; nf\n%s_KVOK:' % (nm, nm), 's_lshl_b32 s4, %s, 19\n s_add_u32 s4, s4, %s' % ('0' if 'KVHOT' in X_ else 's4', sKVB),
           's_lshl_b32 s5, %s, 2\n s_add_u32 s5, s5, s31' % sS, 's_cmp_eq_u32 %s, 0\n s_cselect_b32 s5, 0x%x, s5' % (sS, WSB), 's_lshl_b32 s6, %s, 18\n s_add_u32 s6, s6, %s' % (sS, sKMB),
           's_add_u32 s7, %s, 4096\n s_add_u32 s59, %s, s55\n s_add_u32 s62, %s, s56\n s_mov_b32 s58, 0' % (sM, sM, sM)]
    after = {}
    def at(n, f): after.setdefault(n, []).append(f)
    SCH = dict(B2=1, z5a=5, z5b=8, z6a=11, z6b=14, B3=16, B4=27, z7a=28, z7b=30, z8a=32, z8b=34, vx0=37, vx1=40, z9a=48, z9b=48, z10a=49, z10b=49, kx0=50, kx1=51, fl=55, z0a=60, z0b=60, z1a=61, z1b=61)
    if not LATE: SCH.update(B2=0, z3a=1, z3b=2, z4a=4, z4b=6, z5a=8, z5b=11, z6a=13, B3=15, z6b=17)
    SCH.update(eval(os.environ.get('SCH', '{}')))
    ACT = dict(B2=lambda: bl(1), B3=lambda: bl(2), B4=lambda: bl(3), vx0=lambda: kvl(P(1), 2048, 'vx'), vx1=lambda: kvl(P(1)+4, 3072, 'vx'),
               kx0=lambda: kvl(P(0), 0, 'kx', 's4'), kx1=lambda: kvl(P(0)+4, 1024, 'kx', 's4'), fl=lambda: flags())
    for k_, n_ in SCH.items(): at(n_, ACT[k_] if k_ in ACT else (lambda i, h: (lambda: zl(i, h)))(int(k_[1:-1]), 'ab'.index(k_[-1])))
    for n_, f_ in ((ZL[3], lambda: lload(0)), (ZL[4], lambda: lload(1)), (EP or 99, epa), (32, lambda: aload(8)), (36, lambda: aload(9))): at(n_, f_)
    if PFV: at(PFV, pfv)
    for k_, n_ in enumerate((43, 45, 46, 12, 17, 21, 47)): at(n_, (lambda t: (lambda: A(t)))(sal[k_]))
    def sm(n, acc, af):
        f = ORD[n]; kind, i = LOC[f]
        if kind == 'Z': A.wait(vm=('Z', i)); b = v(P(ZP[n]), 8)
        elif kind == 'L': A.wait(lg=('L', i)); b = v(P(4+i % 2), 8)
        else: b = R(i, 8)
        A('v_smfmac_f32_16x16x64_bf16 %s, %s, %s, v%d' % (v(acc, 4), v(af, 4), b, rIDX))
        if kind == 'L' and i+2 < 18 and i+2 not in (L2, L2+1): lload(i+2)
        for f_ in after.get(n, ()): f_()
    def cvt(d, s_, s2=None): A('v_cvt_pk_bf16_f32 v%d, v%d, v%d' % (d, s_, s_+1 if s2 is None else s2))
    def zero(b, n):
        for i in range(0, n, 2): A('v_mov_b64 %s, 0' % v(b+i, 2))
    DPP = 'row_ror:8 row_mask:0xf bank_mask:0xf'
    def bg(n=1):
        for _ in range(n):
            k = st['k']
            A.wait(lg=('A', 7+k))
            for t in range(2): sm(46+2*k+t, AV+4*t, ASL(7+k))
            if k+3 < 7: aload(10+k)
            st['k'] += 1
    def kst(): A('s_not_b64 exec, s[50:51]\n buffer_store_dwordx4 %s, v%d, %s, s6 offen %s\n s_mov_b64 exec, -1' % (v(AQ, 4), rL, WS, KMF))
    def vst(): A('buffer_store_dwordx4 %s, v%d, %s, s6 offen offset:1024 %s' % (v(AV, 4), rL, WS, KMF))
    def fst(): A('s_mov_b64 exec, 1\n buffer_store_dword v%d, v%d, %s, s5 offen sc1' % (rIDX, rL, WS)); stamp(A, 's5', rT, rL); A('s_mov_b64 exec, -1')
    if FLN: at(FLN, fst)
    def flags(): A('v_lshrrev_b32 v%d, 2, v%d\n buffer_load_dword v%d, v%d, %s, s71 offen sc1' % (rT, rL, rFL, rT, WS))
    A('%s_PAIR:' % nm); set_pb(A)
    if TL: A('s_mov_b64 exec, 1\n s_lshl_b32 s3, %s, 2\n s_lshl_b32 s59, %s, 7\n s_add_u32 s3, s3, s59\n s_add_u32 s3, s3, 0x1b000' % (sH, sPAIR)); stamp(A, 's3', 16, rL); A('s_mov_b64 exec, -1')
    A('s_lshl_b32 s3, %s, 14\n s_add_u32 s54, s3, %s\n s_add_u32 s54, s54, 0x%x\n s_lshl_b32 s59, %s, 12\n s_add_u32 %s, s54, s59\n s_add_u32 s3, s3, s59' % (sH, sPB, O_KV, sW, sKVB))
    A('s_lshr_b32 s3, s3, 1\n s_add_u32 %s, s3, %s\n s_add_u32 %s, %s, 0x%x' % (sKMB, sPB, sKMB, sKMB, O_KM))
    A('s_lshl_b32 s3, %s, 13\n s_lshl_b32 s59, %s, 8\n s_add_u32 %s, s3, s59\n s_add_u32 s71, %s, %d\n s_add_u32 %s, %s, %d\n s_mov_b32 %s, 0' % (sPAIR, sH, sFB, sFB, F_KV, sFB, sFB, F_KM, sS))
    A('s_sub_u32 s31, %s, 4\n s_cmp_eq_u32 %s, 3\n s_cselect_b32 s31, s31, 0x%x' % (sFB, sW, WSB))
    A('v_bfe_u32 v16, v%d, 5, 3\n v_mul_u32_u24 v16, 1280, v16\n v_lshrrev_b32 v17, 8, v%d\n v_lshl_add_u32 v16, v17, 5, v16\n v_and_b32 v17, 16, v%d\n v_add_u32 v16, v16, v17' % (rL, rL, rL))
    A('s_lshl_b32 s3, %s, 7\n s_lshr_b32 s59, s55, 3' % sW)
    A('buffer_load_dwordx4 %s, v16, s[24:27], s3 offen\n buffer_load_dwordx4 %s, v16, s[24:27], s3 offen offset:512\n buffer_load_dwordx4 %s, v16, s[24:27], s59 offen' % (v(AF, 4), v(AF+4, 4), v(AF+8, 4)))
    for i in range(5): zload(i)
    poll(A, 's71', '1', 16, 3, 0); zero(AQ, 24); kvl(P(0), 0, 'kx', sKVB); kvl(P(0)+4, 1024, 'kx', sKVB)
    A('s_add_u32 s7, %s, 4096\n s_add_u32 s59, %s, s55\n s_add_u32 s62, %s, s56' % (sMO, sMO, sMO))
    A('buffer_store_dwordx4 %s, v%d, %s, s7 offen%s\n buffer_store_dwordx4 %s, v%d, %s, s59 offen%s' % (v(AF+4, 4), rW2, WS, sc, v(AF+8, 4), rL, WS, sc))
    A('v_mov_b32 v%d, 0\n s_waitcnt vmcnt(0) lgkmcnt(0)\n s_barrier' % rFL)
    if DBG: A('s_mov_b32 s100, 0\n s_mov_b32 s98, 0\n' + '\n'.join('s_mov_b32 s%d, 0' % x for x in AC_))
    A('%s_STEP:' % nm); st['loop'] = 1
    A.vq = []; A.lq = []
    mw(0)
    if DBG:
        ts(8); A('s_waitcnt lgkmcnt(0)\n s_cmp_lt_u32 %s, 4\n s_cbranch_scc1 %s_NA' % (sS, nm))
        for i in range(8): A('s_sub_u32 s3, s%d, s%d\n s_add_u32 s%d, s%d, s3' % (80+2*i, 78+2*i, AC_[i], AC_[i]))
        if DBG == 2:
            A('s_and_b32 s3, %s, 7\n s_cbranch_scc1 %s_NA\n s_lshl_b32 s3, %s, 10\n s_lshl_b32 s96, %s, 5\n s_add_u32 s3, s3, s96\n s_add_u32 s3, s3, 0x80000' % (sS, nm, sS, sRID))
            for i in range(8): A('v_mov_b32 v%d, s%d' % (AF+4+i, 78+2*i))
            A('s_mov_b64 exec, 1\n buffer_store_dwordx4 %s, v%d, %s, s3 offen\n buffer_store_dwordx4 %s, v%d, %s, s3 offen offset:16\n s_mov_b64 exec, -1\n s_waitcnt vmcnt(0)' % (v(AF+4, 4), rL, WS, v(AF+8, 4), rL, WS))
        A('%s_NA:' % nm); ts(0)
    st['k'] = 0
    n = 0; ia = 0
    for p in range(10):
        if p in OWN:
            j = OWN.index(p)
            if j: bchk(j); ts('b%d' % j)
            if j == 1: mw(j)
            for q in range(6):
                sm(n, AQ + q*4, BD[j]); n += 1
                if q == BQ and j < 2: A.wait(lg='mw'); A('s_barrier'); A.wait(vm='Y'); aload(ia); aload(ia+1)
                if n == 3: A('v_cmp_ne_u32 s[48:49], 0, v%d\n s_lshl_b32 s72, %s, 19\n s_add_u32 s72, s72, %s' % (rFL, '0' if 'KVHOT' in X_ else sS, sKVB))
            if j < 2: aload(ia+2)
        else:
            if p == 9: bchk(3)
            A.wait(lg=('A', ia))
            for q in range(4): sm(n, AQ + q*4, ASL(ia)); n += 1
            ia += 1
    ts(1); bg(1)
    for b in (AQ, AQ+8):
        for k in range(4): cvt(b+k, b+2*k)
        A('v_mfma_f32_16x16x32_bf16 %s, %s, %s, 0' % (v(b+4, 4), v(b, 4), v(SEL, 4)))
    bg(1)
    cvt(AQ, AQ+4); cvt(AQ+1, AQ+6); cvt(AQ+2, AQ+12); cvt(AQ+3, AQ+14)
    SD = (P(4), P(4)+4, AQ+8)
    for d, src in zip(SD, (P(0), P(0)+4, AQ)): A('v_mfma_f32_16x16x32_bf16 %s, %s, %s, 0' % (v(d, 4), v(src, 4), v(AQ, 4)))
    bg(1)
    A('s_mov_b64 exec, s[50:51]')
    for t in range(3): A('ds_write_b128 v%d, %s offset:%d' % (rSW, v(SD[t], 4), SCB + t*2048), tag='sw')
    A('s_mov_b64 exec, -1')
    bg(1)
    if KMP >= 2: kst()
    A.wait(lg='sw'); A('s_barrier'); ts(2)
    for w in range(4): A('ds_read_b128 %s, v%d offset:%d' % (v(P(4)+4*w, 4), rSR, SCB + w*512), tag=('sr', w))
    for w in range(4): A('ds_read_b32 v%d, v%d offset:%d' % (AQ+4+w, rSR2, SCB + 4096 + 256 + w*512), tag='sm')
    bg(1)
    if KMP == 0: kst()
    bg(2)
    S = P(4); E = AQ+12; PX = P(5); L_ = AQ+8
    A.wait(lg=('sr', 1))
    for j in range(4): A('v_add_f32 v%d, v%d, v%d' % (S+j, S+j, S+4+j))
    A.wait(lg=('sr', 3))
    for j in range(4): A('v_add_f32 v%d, v%d, v%d' % (S+8+j, S+8+j, S+12+j))
    A.wait(lg='sm')
    A('v_add_f32 v%d, v%d, v%d\n v_add_f32 v%d, v%d, v%d' % (AQ+4, AQ+4, AQ+5, AQ+6, AQ+6, AQ+7))
    for j in range(4): A('v_add_f32 v%d, v%d, v%d' % (S+j, S+j, S+8+j))
    A('v_add_f32 v%d, v%d, v%d\n v_mul_f32 v%d, s70, v%d' % (AQ+4, AQ+4, AQ+6, AQ+4, AQ+4))
    for k in range(4): cvt(AV+k, AV+2*k)
    if KMP in (0, 4): vst()
    A.wait(vm='vx')
    A('%s_EXP:' % nm)
    for j in range(4): A('v_exp_f32 v%d, v%d' % (E+j, S+j))
    A('v_exp_f32 v%d, v%d' % (AQ+5, AQ+4))
    cvt(PX, E); cvt(PX+1, E+2); cvt(PX+4, AQ+5, AQ+5)
    A('v_add_f32 v%d, v%d, v%d' % (L_, E, E+1))
    A('v_mov_b32_dpp v%d, v%d %s\n v_mov_b32_dpp v%d, v%d %s\n v_mov_b32_dpp v%d, v%d %s' % (PX+2, PX, DPP, PX+3, PX+1, DPP, PX+5, PX+4, DPP))
    A('v_add_f32 v%d, v%d, v%d\n v_add_f32 v%d, v%d, v%d' % (L_+1, E+2, E+3, L_, L_, AQ+5))
    ts(3)
    for t in range(2): A('v_mfma_f32_16x16x32_bf16 %s, %s, %s, 0' % (v(AF+4*t, 4), v(P(1)+4*t, 4), v(PX, 4)))
    A('v_add_f32 v%d, v%d, v%d' % (L_, L_, L_+1))
    for t in range(2): A('v_mfma_f32_16x16x16_bf16 %s, %s, %s, %s' % (v(AF+4*t, 4), v(AV+2*t, 2), v(PX+4, 2), v(AF+4*t, 4)))
    if KMP == 3: vst()
    A('v_add_f32_dpp v%d, v%d, v%d %s' % (L_, L_, L_, DPP))
    xmax(A, L_, L_+1, 'v_add_f32')
    A('v_med3_f32 v%d, v%d, s60, v%d' % (L_+1, L_, L_) if 0 else 'v_mov_b32 v%d, s61\n v_rcp_f32 v%d, v%d\n v_med3_f32 v%d, v%d, s60, v%d\n v_cmp_neq_f32 vcc, v%d, v%d' % (L_+1, L_+2, L_, L_+1, L_, L_+1, L_, L_+1))
    for j in range(0, 8, 2): A('v_pk_mul_f32 %s, %s, %s op_sel_hi:[1,0]' % (v(AF+j, 2), v(AF+j, 2), v(L_+2, 2)))
    A('s_cbranch_vccnz %s_FB ; nf\n%s_OK:' % (nm, nm)); zl(2, 0)
    for k in range(4): cvt(AF+8+k, AF+2*k)
    A('s_mov_b64 exec, s[50:51]'); A('ds_write_b128 v%d, %s offset:8192' % (rSW, v(AF+8, 4)), tag='ow'); A('s_mov_b64 exec, -1')
    lload(L2); lload(L2+1)
    if KMP == 1: kst()
    if KMP in (1, 2): vst()
    zl(2, 1)
    if not FLN: fst()
    A('s_cmp_eq_u32 %s, 63\n s_cbranch_scc1 %s_LAST ; nf' % (sS, nm))
    A.wait(lg='ow'); A('s_barrier'); ts(4)
    for k in range(2): A('ds_read_b128 %s, v%d offset:%d' % (v(AF+4*k, 4), rL, 8192 + k*1024), tag=('O', k))
    zero(AQ, 24)
    def fin(u):
        b = AQ + (u % 3)*8; d = AF + 8 + (u & 1)*2
        o = ['v_add_f32 v%d, v%d, v%d' % (b+2*j, b+2*j, b+2*j+1) for j in range(4)]
        o += ['v_cvt_pk_bf16_f32 v%d, v%d, v%d' % (d+t, b+4*t, b+4*t+2) for t in range(2)]
        o.insert(5, 'v_and_or_b32 v%d, v%d, -2, s28' % (d, d)); o[5], o[6] = o[6], o[5]
        o += ['buffer_store_dwordx2 %s, v%d, %s, %s offen%s' % (v(d, 2), rPS, WS, (sP, 's73', 's74', 's75', 's76')[u], sc)]
        if u < 2: o += ['v_mov_b64 %s, 0' % v(b+j, 2) for j in range(0, 8, 2)]
        return o
    pend = []
    for u in range(5):
        for q in range(4):
            k, t = q >> 1, q & 1
            A.wait(lg=('O', k))
            sm(60+u*4+q, AQ+(u % 3)*8+4*t, AF+4*k)
            if q == 1 and u: pend += fin(u-1)
            for _ in range(3):
                if pend: A(pend.pop(0))
    for x in pend + fin(4): A(x)
    ts(5)
    if 'MEAS' in X_:
        A('s_waitcnt vmcnt(0)'); ts(6)
        if 'M1' in X_: A('buffer_load_dword v%d, v%d, %s, s71 offen sc1' % (rT, rIDX, WS))
        elif 'M2' in X_: bl(0)
        else: pa()
        A('s_waitcnt vmcnt(0)'); ts(7); st['nots'] = 1
    nst = sum(1 for x in A.L[A.L.index('%s_NEP:' % nm):] if 'buffer_' in x) if EP else 0
    if EP: A('s_cmp_eq_u32 %s, 0\n s_cbranch_scc1 %s_C0 ; nf' % (sW, nm))
    A('s_cmp_ge_u32 %s, 80\n s_cbranch_scc1 %s_NR ; nf' % (sRID, nm))
    def rsel():
        A('v_lshrrev_b32 v%d, 2, v%d\n v_and_b32 v%d, 16, v%d\n s_movk_i32 s3, 0x3f80\n v_lshlrev_b32_e64 v%d, v%d, s3' % (rT, rL, rT, rT, rT, rT))
        for k, m_ in enumerate((0x00110011, 0x11001100, 0x00220022, 0x22002200)): A('s_mov_b32 vcc_lo, 0x%x\n s_mov_b32 vcc_hi, 0x%x\n v_cndmask_b32 v%d, 0, v%d, vcc' % (m_, m_, RSEL+k, rT))
    if not RL: rsel()
    if DL0: A('s_sleep %d' % DL0)
    A('s_cmp_lg_u32 %s, 0\n s_cbranch_scc1 %s_C1 ; nf' % (sW, nm))
    A('%s_C0:' % nm); pa(AQ); RL and rsel(); zload(3); zload(4); A('s_waitcnt vmcnt(4)\n%s_CK:' % nm)
    red(AQ)
    for i in range(4): A('v_bitop3_b32 v%d, v%d, v%d, s28 bitop3:0x7e' % (AF+4+i, AQ+4*i, AQ+4*i+2))
    A('v_or3_b32 v%d, v%d, v%d, v%d\n v_bitop3_b32 v%d, v%d, v%d, 1 bitop3:0xa8\n v_cmp_ne_u32 vcc, 0, v%d\n s_cbranch_vccnz %s_PB ; nf' % (rT, AF+4, AF+5, AF+6, rT, rT, AF+7, rT, nm))
    A('%s_PA1:' % nm); bl(0); ts('c0')
    D = AF+8
    A('v_mov_b32 v%d, s57' % (AF+4))
    A('v_add_f32_dpp v%d, v%d, v%d %s\n v_add_f32_dpp v%d, v%d, v%d %s\n s_mov_b64 exec, s[50:51]' % (D, D, D, DPP, D+1, D+1, D+1, DPP))
    cvt(D, D)
    A('buffer_store_dword v%d, v%d, %s, %s offen%s\n buffer_store_dword v%d, v%d, %s, %s offen%s\n s_mov_b64 exec, -1' % (D, rMS, WS, sM, sc, AF+4, rMS, WS, sMO, sc))
    ts(6); zero(AQ, 24)
    if EP: A('s_cmp_lg_u32 %s, 0\n s_cbranch_scc1 %s_NZ ; nf' % (sW, nm)); zero(AQ, 24); A('%s_NZ:' % nm)
    if DLC: A('s_cmp_lg_u32 %s, 0\n s_cbranch_scc1 %s_NC\n s_sleep %d\n s_branch %s_BX\n%s_NC:' % (sW, nm, DLC, nm, nm))
    A('s_waitcnt vmcnt(%d)\n%s_BL:' % (2, nm)); qc(AF, 1, 's_cbranch_vccnz %s_BX' % nm)
    A('%s_BOK0:' % nm); ts(7)
    A('s_xor_b32 s28, s28, 1\n s_mov_b32 %s, %s\n s_add_u32 %s, %s, 10240\n s_cmp_eq_u32 %s, 0x%x\n s_cselect_b32 %s, 0x%x, %s\n s_add_u32 %s, %s, 1' % (sMO, sM, sM, sM, sM, RING_M+30720, sM, RING_M, sM, sS, sS))
    A('s_branch %s_STEP ; nf' % nm)
    def anyeq(b, n):
        A('s_mov_b64 s[96:97], 0')
        for k in range(n): A('v_cmp_eq_u32 vcc, s57, v%d\n s_or_b64 s[96:97], s[96:97], vcc' % (b+k))
        A('s_cmp_eq_u64 s[96:97], 0')
    A('%s_C1:' % nm)
    if DLY: A('s_sleep %d' % DLY)
    if PZ == 1: A('s_cmp_lt_u32 %s, 64\n s_cbranch_scc1 %s_C0\n s_sleep %d\n s_branch %s_C0' % (sRID, nm, DLA, nm))
    if PZ >= 2: A('s_cmp_lt_u32 %s, 64\n s_cbranch_scc1 %s_C2\n s_sleep %d\n s_branch %s_C0\n%s_C2:' % (sRID, nm, PZ, nm, nm))
    RL and rsel(); zload(3); zload(4)
    if DL1: A('s_sleep %d' % DL1)
    if DLA: A('s_cmp_lt_u32 %s, 64\n s_cbranch_scc1 %s_PAR2\n s_sleep %d' % (sRID, nm, DLA))
    A('%s_PAR2:' % nm); pa(AQ); A('s_waitcnt vmcnt(0)\n s_branch %s_CK' % nm)
    A('%s_NR:' % nm); ts(6); ts('c0')
    zero(AQ, 24)
    if DLZ: A('s_sleep %d' % DLZ)
    for i in LATE: zload(i)
    if DLB: A('s_sleep %d' % DLB)
    A('%s_BX:' % nm); bl(0)
    for i in range(WARM): A('v_smfmac_f32_16x16x64_bf16 %s, %s, %s, v%d' % (v((RSEL, AF+4)[i & 1], 4), v(SEL, 4), v(104, 8), rIDX))
    if DBG: A('s_add_u32 s98, s98, 1')
    A('s_add_u32 s99, s99, 1\n s_and_b32 s3, s99, 63\n s_waitcnt vmcnt(0)\n s_cbranch_scc1 %s_BL' % nm)
    anyeq(AF, 4); A('s_cbranch_scc1 %s_BOK0\n s_cmp_ge_u32 s99, 0x%x\n s_cbranch_scc1 %s_BOK0\n s_branch %s_BL' % (nm, SPIN, nm, nm))
    A('%s_PB:' % nm)
    if DBG: A('s_add_u32 s100, s100, 1')
    A('s_add_u32 s99, s99, 1\n s_cmp_lt_u32 s99, 0x%x\n s_cbranch_scc1 %s_PAR2\n s_branch %s_PA1' % (SPIN, nm, nm))
    for j in (1, 2, 3):
        A('%s_BR%d:\n v_cmp_eq_u32 vcc, s57, v%d\n s_cbranch_vccnz %s_BS%d' % (nm, j, rT, nm, j)); anyeq(BD[j], 4); A('s_cbranch_scc1 %s_BOK%d\n%s_BS%d:' % (nm, j, nm, j))
        if DBG: A('s_add_u32 s98, s98, %d' % (1, 1000, 1000000, 1000000)[j])
        A('s_add_u32 s99, s99, 1\n s_cmp_ge_u32 s99, 0x%x\n s_cbranch_scc1 %s_BOK%d' % (SPIN, nm, j))
        bl(j); A('s_waitcnt vmcnt(0)\n s_branch %s_BC%d' % (nm, j))
    A('%s_WKV:' % nm); flags()
    A('s_waitcnt vmcnt(0)\n v_cmp_ne_u32 s[48:49], 0, v%d\n s_bitcmp1_b64 s[48:49], s4\n s_cbranch_scc1 %s_KVOK' % (rFL, nm))
    A('s_add_u32 s99, s99, 1\n s_cmp_lt_u32 s99, 0x%x\n s_cbranch_scc1 %s_WKV\n s_branch %s_KVOK' % (SPIN, nm, nm))
    A('%s_FB:\n s_cmp_lg_u32 s58, 0\n s_cbranch_scc1 %s_OK\n s_mov_b32 s58, 1' % (nm, nm))
    A('v_max3_f32 v%d, v%d, v%d, v%d\n v_max3_f32 v%d, v%d, v%d, v%d\n v_max_f32_dpp v%d, v%d, v%d %s' % (L_, S, S+1, S+2, L_, L_, S+3, AQ+4, L_, L_, L_, DPP))
    xmax(A, L_, L_+1, 'v_max_f32')
    for r in (S, S+1, S+2, S+3, AQ+4): A('v_sub_f32 v%d, v%d, v%d' % (r, r, L_))
    A('s_branch %s_EXP' % nm)
    A('%s_LAST:\n s_waitcnt vmcnt(0) lgkmcnt(0)\n s_barrier' % nm)
    if DBG:
        for i, x in enumerate(AC_ + [100, 98]): A('v_mov_b32 v%d, s%d' % (16+i, x))
        A('s_mov_b32 s3, 0x1000\n s_cmp_eq_u32 %s, 2\n s_cselect_b32 s3, 160, s3\n s_cmp_eq_u32 %s, 0\n s_cselect_b32 s3, 208, s3\n s_cmp_eq_u32 %s, 5\n s_cselect_b32 s3, s3, 0x1000\n v_mov_b32 v28, s3' % (sW, sW, sH))
        A('buffer_store_dwordx4 v[16:19], v28, s[20:23], 0 offen\n buffer_store_dwordx4 v[20:23], v28, s[20:23], 0 offen offset:16\n buffer_store_dwordx2 v[24:25], v28, s[20:23], 0 offen offset:32\n s_waitcnt vmcnt(0)')
    A('s_add_u32 s49, %s, 252' % sFB); signal(A, 's49', 16, False)
    A('s_nop 7\n s_nop 7'); next_pair(A, nm)
```
